```python
import torch

def _softmax(x, axis=-1):
    return torch.softmax(x, dim=axis)
def _gelu(x):
    return torch.nn.functional.gelu(x, approximate="tanh")
def _silu(x):
    return torch.nn.functional.silu(x)
def _sigmoid(x):
    return torch.sigmoid(x)
def _layernorm(x, axis=-1, eps=1e-5):
    m = x.mean(dim=axis, keepdim=True)
    v = x.var(dim=axis, keepdim=True, unbiased=False)
    return (x - m) / torch.sqrt(v + eps)
def _scatter_add(tgt, idx, src, axis=0):
    return tgt.clone().index_add_(axis, idx, src)
def _segment_sum(src, seg, n):
    out = torch.zeros((n,) + src.shape[1:], dtype=src.dtype)
    return out.index_add_(0, seg, src)
def _pad(x, pw):
    flat = tuple(v for pair in reversed(pw) for v in pair)
    return torch.nn.functional.pad(x, flat)

kernel_name = 'standalone__gqa_block_cached__near_ridge'

def setup_inputs():

    _w = (lambda a: (lambda t: t.to(torch.bfloat16) if t.is_floating_point() else t)(torch.as_tensor(a)))
    B, Sq, D = 16, 240, 640
    Hq, Hkv, Sk, Dh = 32, 32, 1024, 128
    assert Hq % Hkv == 0, (Hq, Hkv)
    return {
        "x": _w((lambda *s: torch.randn(*s, dtype=torch.bfloat16) * 0.8)(B, Sq, D)),
        "k_cache": _w((lambda *s: torch.randn(*s, dtype=torch.bfloat16) * 0.8)(B, Hkv, Sk, Dh)),
        "v_cache": _w((lambda *s: torch.randn(*s, dtype=torch.bfloat16) * 0.05)(B, Hkv, Sk, Dh)),
        "wq": _w((lambda *s: torch.randn(*s, dtype=torch.bfloat16) * 0.8)(D, Hq * Dh) * (D ** -0.5)),
        "wo": _w((lambda *s: torch.randn(*s, dtype=torch.bfloat16) * 0.05)(Hq * Dh, D) * ((Hq * Dh) ** -0.5)),
    }

def reference(x, k_cache, v_cache, wq, wo):
    B, Sq, D = x.shape
    Hq, Dh = 32, 128
    Hkv = k_cache.shape[1]
    rep = Hq // Hkv
    q = (lambda x, *d: x.permute(*d))((x @ wq).reshape(B, Sq, Hq, Dh), 0, 2, 1, 3)
    k = (lambda x, n, axis: torch.repeat_interleave(x, n, dim=axis))(k_cache, rep, axis=1)
    v = (lambda x, n, axis: torch.repeat_interleave(x, n, dim=axis))(v_cache, rep, axis=1)
    scores = torch.einsum("bhqd,bhkd->bhqk", q, k) * (Dh ** -0.5)
    p = _softmax(scores, axis=-1)
    o = torch.einsum("bhqk,bhkd->bhqd", p, v)
    return (lambda x, *d: x.permute(*d))(o, 0, 2, 1, 3).reshape(B, Sq, Hq * Dh) @ wo
```

```python
import re

TRANS = ("v_exp_f32", "v_log_f32", "v_rcp_f32", "v_rsq_f32", "v_sqrt_f32")
_reg = re.compile(r"^(-?)(?:abs\()?([vas])(?:(\d+)|\[(\d+):(\d+)\])\)?$")

def regs_of(tok):
    tok = tok.strip()
    if tok in ("vcc",): return {("s", "vcc")}
    if tok == "m0": return {("s", "m0")}
    if tok == "exec": return {("s", "exec")}
    m = _reg.match(tok)
    if not m: return set()
    f = m.group(2)
    if m.group(3) is not None: return {(f, int(m.group(3)))}
    return {(f, i) for i in range(int(m.group(4)), int(m.group(5)) + 1)}

class I:
    __slots__ = ("text", "op", "kind", "rd", "wr", "srcC", "srcAB", "tag", "dma", "states")
    def __init__(self, text, tag=None):
        self.text = text; self.tag = tag
        t = text.split(";")[0].strip()
        self.rd = set(); self.wr = set(); self.srcC = set(); self.srcAB = set(); self.dma = False
        self.states = 1
        if t.endswith(":"):
            self.op = t; self.kind = "label"; self.states = 0; return
        if t.startswith("."):
            self.op = t; self.kind = "dir"; self.states = 0; return
        parts = t.split(None, 1)
        op = parts[0]; self.op = op
        rest = parts[1] if len(parts) > 1 else ""
        ops = [x.strip() for x in re.split(r",(?![^\[]*\])", rest)] if rest else []
        if ops:
            last = ops[-1].split()
            mods = last[1:]; ops[-1] = last[0] if last else ""
        else:
            mods = []
        R = [regs_of(x) for x in ops]
        if op.startswith("v_mfma"):
            self.kind = "mfma"; self.wr = R[0]; self.srcAB = R[1] | R[2]; self.srcC = R[3]; self.rd = R[1] | R[2] | R[3]
        elif op.startswith("ds_read"):
            self.kind = "ds"; self.wr = R[0]; self.rd = R[1]
        elif op.startswith("ds_write"):
            self.kind = "ds"; self.rd = set().union(*R)
        elif op.startswith("buffer_load"):
            self.kind = "vmem"
            if "lds" in mods:
                self.dma = True; self.rd = set().union(*R) | {("s", "m0")}
            else:
                self.wr = R[0]; self.rd = set().union(*R[1:])
                if "d16" in op: self.rd |= R[0]
        elif op.startswith("buffer_store") or op.startswith("buffer_atomic"):
            self.kind = "vmem"; self.rd = set().union(*R)
        elif op.startswith("buffer_"):
            self.kind = "vmem"
        elif op == "s_waitcnt":
            self.kind = "wait"
        elif op == "s_barrier":
            self.kind = "bar"
        elif op == "s_nop":
            self.kind = "nop"; self.states = int(ops[0], 0) + 1
        elif op.startswith("s_cbranch") or op == "s_branch" or op == "s_endpgm":
            self.kind = "branch"
        elif op.startswith("s_load") or op.startswith("s_mem"):
            self.kind = "smem"; self.wr = R[0]; self.rd = set().union(*R[1:]) if len(R) > 1 else set()
        elif op.startswith("s_cmp") or op in ("s_setprio", "s_sleep"):
            self.kind = "salu"; self.rd = set().union(*R) if R else set()
        elif op.startswith("s_"):
            self.kind = "salu"; self.wr = R[0]; self.rd = set().union(*R[1:]) if len(R) > 1 else set()
            if "saveexec" in op: self.wr |= {("s", "exec")}
        elif op.startswith("v_"):
            self.kind = "trans" if op in TRANS else "valu"
            self.wr = set(R[0]); self.rd = set().union(*R[1:]) if len(R) > 1 else set()
            if "permlane" in op and "swap" in op:
                self.wr = R[0] | R[1]; self.rd = R[0] | R[1]
            if op.startswith("v_fmac") or op.startswith("v_dot2c"): self.rd |= R[0]
        else:
            raise ValueError("unknown op: " + text)
    def __repr__(self): return self.text

def isv(r): return r[0] in ("v", "a")
def mfma_passes(i): return 4 if "16x16x32" in i.op else 8

def need_states(p, c):
    n = 0
    pv = p.kind in ("valu", "trans"); cv = c.kind in ("valu", "trans")
    if pv and c.kind == "mfma" and any(isv(r) for r in p.wr & c.rd): n = max(n, 2)
    if p.kind == "mfma":
        ps = mfma_passes(p); big = {4: 8, 8: 12}[ps]
        if c.kind == "mfma":
            if p.wr & c.srcAB: n = max(n, big)
            if p.wr & c.srcC and not (p.wr == c.srcC and p.op == c.op): n = max(n, {4: 6, 8: 10}[ps])
            if p.wr & c.wr and not (p.wr & c.srcC): n = max(n, 0)
        elif cv or c.kind in ("ds", "vmem"):
            if p.wr & (c.rd | c.wr): n = max(n, big)
        if cv and (p.srcC & c.wr): n = max(n, {4: 3, 8: 7}[ps])
    if p.kind == "trans" and c.kind == "valu" and (p.wr & c.rd): n = max(n, 1)
    if pv and cv:
        w = {r for r in p.wr if isv(r)}
        if w & c.rd:
            if "permlane" in c.op: n = max(n, 2)
            if "readfirstlane" in c.op or "readlane" in c.op: n = max(n, 1)
            if "dpp" in c.text: n = max(n, 2)
        ws = {r for r in p.wr if r[0] == "s"}
        if ws & c.rd: n = max(n, 2)
    if pv and c.kind == "vmem" and {r for r in p.wr if r[0] == "s"} & c.rd: n = max(n, 5)
    if pv and c.kind in ("salu", "branch") and ({r for r in p.wr if r[0] == "s"} & (c.rd | ({("s", "vcc")} if "vcc" in c.op else set()))): n = max(n, 4)
    if p.kind == "salu" and ("s", "m0") in p.wr and c.dma: n = max(n, 1)
    if p.kind == "vmem" and p.op.startswith("buffer_store") and ("x4" in p.op or "x3" in p.op) and (cv or c.kind in ("ds", "vmem", "mfma")):
        if {r for r in p.rd if isv(r)} & c.wr: n = max(n, 2)
    return n

MAXD = 13

def pad_path(segs):
    ins = 0
    hist = []
    for seg in segs:
        k = 0
        while k < len(seg):
            c = seg[k]
            if c.kind not in ("label", "dir"):
                d = 0; short = 0
                for p in reversed(hist):
                    if d >= MAXD: break
                    n = need_states(p, c)
                    if n > d: short = max(short, n - d)
                    d += p.states
                if short:
                    nop = I(f"s_nop {short - 1}")
                    seg.insert(k, nop); hist.append(nop); k += 1; ins += 1
            hist.append(c)
            if len(hist) > 40: hist = hist[-40:]
            k += 1
    return ins

_lg = re.compile(r"lgkmcnt\((\d+)\)")
def lgkm_path(segs, fix=True):
    q = []
    ins = 0
    for seg in segs:
        k = 0
        while k < len(seg):
            c = seg[k]
            if c.kind == "wait":
                m = _lg.search(c.text)
                if m:
                    n = int(m.group(1))
                    if len(q) > n: q = q[len(q) - n:] if n else []
            elif c.kind not in ("label", "dir"):
                touched = c.rd | c.wr
                idx = -1
                for j, p in enumerate(q):
                    if p.wr & touched: idx = j
                if idx >= 0:
                    if not fix: raise RuntimeError(f"missing lgkmcnt before {c.text}")
                    needed = q[idx]
                    pos = k
                    if c.kind == "mfma":
                        j = k - 1
                        while j >= 0 and seg[j].kind not in ("mfma", "label", "branch", "bar") and seg[j] is not needed: j -= 1
                        if j >= 0 and seg[j].kind == "mfma": pos = j + 1
                    later = sum(1 for x in seg[pos:k] if x.kind == "ds")
                    n = len(q) - 1 - idx - later
                    assert n >= 0
                    n = min(n, 15)
                    if pos < len(seg) and seg[pos].kind == "wait" and not _lg.search(seg[pos].text) and pos < k:
                        seg[pos] = I(seg[pos].text + f" lgkmcnt({n})")
                    elif pos < k and seg[pos].kind == "wait" and _lg.search(seg[pos].text):
                        seg[pos] = I(_lg.sub(f"lgkmcnt({min(n, int(_lg.search(seg[pos].text).group(1)))})", seg[pos].text))
                    else:
                        seg.insert(pos, I(f"s_waitcnt lgkmcnt({n})")); k += 1
                    ins += 1
                    keep = n + later
                    q = q[len(q) - keep:] if keep else []
                if c.kind == "ds": q.append(c)
            k += 1
    return ins

class Seg(list):
    def e(self, text, tag=None):
        for t in text.split("\n"):
            t = t.strip()
            if t: self.append(I(t, tag))
    def gaps(self, mf, sc, ds, va):
        for g, m in enumerate(mf):
            if m is not None: self.e(m)
            s = sc.get(g, [])
            for x in s[:1]: self.e(x)
            for x in ds.get(g, []): self.e(x)
            for x in va.get(g, []): self.e(x)
            for x in s[1:]: self.e(x)

def finish(paths):
    for _ in range(10):
        n = 0
        for p in paths: n += lgkm_path(p)
        for p in paths: n += pad_path(p)
        if n == 0: return
    raise RuntimeError("no fixpoint")

_vm = re.compile(r"vmcnt\(@(\w+),(\d+)\)")
def resolve_vm(paths):
    best = {}
    for segs in paths:
        q = []; gid = {}
        for seg in segs:
            for c in seg:
                if c.kind == "vmem" and not c.op.startswith("buffer_store"):
                    m = re.search(r";g (\w+) (\d+)", c.text)
                    if m:
                        cls = m.group(1)
                        if int(m.group(2)) == 0: gid[cls] = gid.get(cls, -1) + 1
                        q.append((cls, gid[cls]))
                    else: q.append((None, 0))
                elif c.kind == "wait":
                    m = _vm.search(c.text)
                    if m:
                        cls, G = m.group(1), int(m.group(2))
                        lim = gid[cls] - G
                        idx = [i for i, (k, g) in enumerate(q) if k == cls and g <= lim]
                        n = len(q) - 1 - max(idx) if idx else 63
                        best[id(c)] = (c, min(n, best.get(id(c), (c, 63))[1]))
    for c, n in best.values():
        c.text = _vm.sub(f"vmcnt({n})", c.text)
```

```python
import sys, struct, math
from ir import I, Seg, finish, resolve_vm

def f2u(x): return struct.unpack("<I", struct.pack("<f", x))[0]
MF = "v_mfma_f32_16x16x32_bf16"
def R(f, b, n=4): return f"{f}[{b}:{b+n-1}]"

class Opt:
    nt_w = True
    nt_kv = True
    stamp = False
    prefetch_code = True
    k2_nt_o = False
    k2_nt_w = False
    o_store_nt = False
OPT = Opt()

GS = 1056; TILE = 8 * GS; SLOT = 2 * TILE; NSLOT = 6
XB = NSLOT * SLOT; XBUF = 30720
assert XB + 2 * XBUF <= 163840
KVBIAS = 3 * (GS - 256)
vLANE, vKB, vVB, vKA, vVA = 1, 2, 3, 4, 5
vF, vFKV, vXF, vXR, vST = 6, 10, 14, 18, 20
vT = 21
vK, vV, vONE, vL = 32, 64, 96, 100
vQ, vS, vP, vNM = 128, 192, 224, 240
sW = 3
sRD, sWOFF, sFV, sFS, sFL, sFO, sTMP = 32, 34, 35, 36, 37, 38, 39
sXO, sXH, sXM, sXD, sCNT, sHH, sC, sTHR = 40, 41, 42, 43, 44, 45, 46, 47
sSO = 48

def stamp(seg, idx):
    if OPT.stamp:
        seg.e(f"s_memtime s[{70+2*idx}:{71+2*idx}]")
        seg.e("s_waitcnt lgkmcnt(0)")

def ring_dma(i):
    return f"buffer_load_dwordx4 v{vF+i}, s[4:7], s{sFO} offen offset:{GS*i} {'nt ' if OPT.nt_kv else ''}lds ;g ring {i}"
def x_dma(i):
    so = sXO if i < 4 else sXH
    return f"buffer_load_dwordx4 v{vXF+(i&3)}, s[12:15], s{so} offen offset:{1024*(i&3)} {'nt ' if OPT.nt_w else ''}lds ;g x {i}"

def step_scalars(sc, g0):
    ops = [f"s_add_u32 m0, s{sRD}, s{sWOFF}",
           f"s_add_u32 s{sRD}, s{sRD}, {SLOT}",
           f"s_cmp_ge_u32 s{sRD}, {NSLOT*SLOT}",
           f"s_cselect_b32 s{sRD}, 0, s{sRD}",
           f"s_max_i32 s{sTMP}, s{sFV}, 0",
           f"s_min_i32 s{sFO}, s{sTMP}, s{sFL}",
           f"s_add_i32 s{sFV}, s{sFV}, s{sFS}"]
    for j, o in enumerate(ops): sc.setdefault(g0 + j, []).append(o)
    return g0 + len(ops)

def acc_reg(hh, q, dt): return ("v", 128 + 32*q + 4*dt) if hh == 0 else ("a", 128 + 32*q + 4*dt)
def wread(f, s):
    hh, dt = f >> 3, f & 7
    return f"ds_read_b64_tr_b16 {R('a', 4*f + 2*s, 2)}, v{vVA} offset:{TILE*hh + 512*s + 32*dt}"
def xread(par, q, ks): return f"ds_read_b128 {R('a', 64 + 16*par + 4*q)}, v{vXR+ks} offset:{2048*q}"
def kread(f): return f"ds_read_b128 {R('v', vK + 4*f)}, v{vKA} offset:{512*(f>>2) + 64*(f&3)}"
def vread(dt, s): return f"ds_read_b64_tr_b16 {R('v', vV + 4*dt + 2*s, 2)}, v{vVA} offset:{TILE + 512*s + 32*dt}"

def w_step(seg, nq, par, last=False, xfill=True, loop_tail=None):
    N = 16 * nq
    mf = []
    for f in range(16):
        for q in range(nq):
            t, b = acc_reg(f >> 3, q, f & 7)
            mf.append(f"{MF} {R(t,b)}, {R('a',4*f)}, {R('a',64+16*par+4*q)}, {R(t,b)}")
    sc, ds, va = {}, {}, {}
    g = step_scalars(sc, 0)
    sc.setdefault(7, []).append("s_waitcnt vmcnt(@ring,4) lgkmcnt(0)")
    sc.setdefault(8, []).append("s_barrier")
    va.setdefault(5, []).append(f"v_add_u32 v{vVA}, s{sRD}, v{vVB}")
    busy = {8}
    if not last:
        gl = 9
        for f in range(16):
            gl = max(gl, nq*f + nq - 1)
            ds.setdefault(gl, []).extend([wread(f, 0), wread(f, 1)]); busy.add(gl); gl += 1
        assert gl <= N
    else:
        va.setdefault(5, []).append(f"v_add_u32 v{vKA}, s{sRD}, v{vKB}")
        for f in range(8):
            ds.setdefault(9 + 2*f, []).append(kread(f)); busy.add(9 + 2*f)
    def free_from(g):
        while g in busy: g += 1
        busy.add(g); return g
    ndma = 4 + (2*nq if (par == 1 and xfill) else 0)
    span = (N - 8 - 12) // ndma
    g = 12
    gg = 0
    for i in range(4):
        gg = free_from(max(g, gg + 2)); ds.setdefault(gg, []).append(ring_dma(i)); g += span
    if par == 1 and xfill:
        for i in range(2*nq):
            gg = free_from(max(g, gg + 2))
            if i == 0: sc.setdefault(gg - 1, []).append(f"s_mov_b32 m0, s{sXM}")
            if i == 4: sc.setdefault(gg - 1, []).append(f"s_add_u32 m0, s{sXM}, 4096")
            ds.setdefault(gg, []).append(x_dma(i)); g += span
        assert gg < N - 6, gg
    if not last:
        g = N - 8
        if par == 1: sc.setdefault(g - 1, []).append("s_waitcnt vmcnt(@x,1)")
        for q in range(nq):
            gg = free_from(g); ds.setdefault(gg, []).append(xread(1 - par, q, 1 - par)); g = gg + 1
        assert gg < N
        if par == 0:
            va.setdefault(N - 1, []).append(f"v_add_u32 v{vXR+1}, s{sXD}, v{vXR+1}")
            sc.setdefault(10, []).append(f"s_add_u32 s{sXO}, s{sXO}, 128")
            sc.setdefault(11, []).append(f"s_add_u32 s{sXH}, s{sXH}, 128")
        else:
            va.setdefault(N - 1, []).append(f"v_subrev_u32 v{vXR}, s{sXD}, v{vXR}")
            sc.setdefault(N - 1, []).extend(["s_nop 0", f"s_add_u32 s{sXM}, s{sXM}, s{sXD}", f"s_sub_u32 s{sXD}, 0, s{sXD}"])
    if loop_tail:
        for j, o in enumerate(loop_tail): sc.setdefault(N - 1, []).append(o)
    seg.gaps(mf, sc, ds, va)

def kv_sched(nq):
    if nq == 4: order = [("S",0),("P",2),("S",1),("P",3),("S",2),("P",0),("S",3),("P",1)]; wrapped = (2, 3)
    else: order = [("S",0),("P",1),("S",1),("P",2),("S",2),("P",0)]; wrapped = (1, 2)
    mf = []; pos = {}
    for k, q in order:
        pos[(k, q)] = len(mf)
        if k == "S":
            for kt in range(2):
                s = vS + 8*q + 4*kt
                for d in range(4):
                    c = R('v', vNM + 4*q) if d == 0 else R('v', s)
                    mf.append(("S", q, f"{MF} {R('v',s)}, {R('v', vK + 4*(4*kt+d))}, {R('v', vQ + 16*q + 4*d)}, {c}"))
        else:
            for dt in range(8):
                o = 32*q + 4*dt
                mf.append(("P", q, f"{MF} {R('a',o)}, {R('v', vV + 4*dt)}, {R('v', vP + 4*q)}, {R('a',o)}"))
            mf.append(("P", q, f"{MF} {R('v', vL + 4*q)}, {R('v', vONE)}, {R('v', vP + 4*q)}, {R('v', vL + 4*q)}"))
    N = len(mf)
    used = [0] * N
    fill = []
    BAR = 1
    used[BAR] = 99
    fill.append((0, "sc", "s_waitcnt vmcnt(@ring,4) lgkmcnt(0)"))
    fill.append((BAR, "sc", "s_barrier"))
    sc = {}
    step_scalars(sc, 2)
    for g, l in sc.items():
        for o in l: fill.append((g, "sc", o))
    def put(g, cls, text, cost):
        used[g % N] += cost; fill.append((g, cls, text))
    vfree = pos[("P", wrapped[-1])]; kfree = pos[("S", nq - 1)]
    for f in range(8):
        put(vfree + f, "ds", vread(f, 0), 1); put(vfree + f, "ds", vread(f, 1), 1)
    for f in range(8):
        put(kfree + f, "ds", kread(f), 1)
    put(7, "va", f"v_add_u32 v{vVA}, s{sRD}, v{vVB}", 1)
    put(7, "va", f"v_add_u32 v{vKA}, s{sRD}, v{vKB}", 1)
    dg = (9, 22, 43, N - 7) if nq == 4 else (9, 16, 23, N - 7)
    for i in range(4):
        assert used[dg[i]] == 0, (dg[i], used)
        put(dg[i], "ds", ring_dma(i), 2)
    def place(text, cost, lo, hi):
        for g in range(lo, hi + 1):
            if used[g % N] + cost <= 2:
                put(g, "va", text, cost); return g
        g = min(range(lo, hi + 1), key=lambda g: (used[g % N], g))
        put(g, "va", text, cost); return g
    exps = {}
    for q in range(nq):
        st = pos[("S", q)] + 8 + 2
        dl = pos[("P", q)] - 2
        if dl < st: dl += N
        g = st
        for i in range(8):
            g = place(f"v_exp_f32 v{vS+8*q+i}, v{vS+8*q+i}", 2, g, dl - (7 - i) - 1); exps[(q, i)] = g; g += 1
    for q in range(nq):
        dl = pos[("P", q)] - 2
        if dl < pos[("S", q)]: dl += N
        for i in range(1, 8, 2):
            place(f"v_cvt_pk_bf16_f32 v{vP+4*q+i//2}, v{vS+8*q+i-1}, v{vS+8*q+i}", 1, exps[(q, i)] + 1, dl)
    return mf, fill, N, wrapped, used

def kv_emit(seg, nq, mode, loop_tail=None):
    mf, fill, N, wrapped, used = kv_sched(nq)
    sc, ds, va = {}, {}, {}
    tab = {"sc": sc, "ds": ds, "va": va}
    for g, cls, text in sorted(fill, key=lambda x: -(x[0] // N)):
        w = g >= N
        if mode == "first" and w: continue
        if mode == "tail" and not w: continue
        tab[cls].setdefault(g % N, []).append(text)
    ml = []
    for k, q, t in mf:
        keep = True
        if mode == "first" and (k == "S" or q in wrapped): keep = False
        if mode == "tail" and not (k == "P" and q in wrapped): keep = False
        ml.append(t if keep else None)
    if loop_tail:
        for j, o in enumerate(loop_tail[:-1]): sc.setdefault(N - 3 + j, []).append(o)
    seg.gaps(ml, sc, ds, va)
    if loop_tail: seg.e(loop_tail[-1])

def lane_max4(seg, r, t):
    seg.e(f"v_mov_b32 v{t}, v{r}")
    seg.e(f"v_permlane32_swap_b32 v{r}, v{t}")
    seg.e(f"v_max_f32 v{r}, v{r}, v{t}")
    seg.e(f"v_mov_b32 v{t}, v{r}")
    seg.e(f"v_permlane16_swap_b32 v{r}, v{t}")
    seg.e(f"v_max_f32 v{r}, v{r}, v{t}")

def kv_first(seg, nq):
    for i in range(32 * nq): seg.e(f"v_accvgpr_write_b32 a{i}, 0")
    for i in range(16): seg.e(f"v_mov_b32 v{vL+i}, {'0' if i < 4*nq else '1.0'}")
    for q in range(nq):
        for kt in range(2):
            s = vS + 8*q + 4*kt
            for d in range(4):
                c = "0" if d == 0 else R('v', s)
                seg.e(f"{MF} {R('v',s)}, {R('v', vK + 4*(4*kt+d))}, {R('v', vQ + 16*q + 4*d)}, {c}")
    for q in range(nq):
        s = vS + 8*q; m = vT + q
        seg.e(f"v_max3_f32 v{m}, v{s}, v{s+1}, v{s+2}")
        seg.e(f"v_max3_f32 v{m}, v{m}, v{s+3}, v{s+4}")
        seg.e(f"v_max3_f32 v{m}, v{m}, v{s+5}, v{s+6}")
        seg.e(f"v_max_f32 v{m}, v{m}, v{s+7}")
    for q in range(nq): lane_max4(seg, vT + q, vT + 4 + q)
    for q in range(nq):
        for i in range(4): seg.e(f"v_sub_f32 v{vNM+4*q+i}, 0, v{vT+q}")
        for i in range(8): seg.e(f"v_sub_f32 v{vS+8*q+i}, v{vS+8*q+i}, v{vT+q}")
    kv_emit(seg, nq, "first")

def q_convert(seg, hh):
    for q in range(4):
        for d in range(4):
            dst = vQ + 16*q + 4*d
            src = 128 + 32*q + 8*d
            if hh == 1:
                tb = vS + 8*((4*q + d) & 3)
                for i in range(8): seg.e(f"v_accvgpr_read_b32 v{tb+i}, a{src+i}")
                src = tb
            for i in range(8): seg.e(f"v_mul_f32 v{src+i}, s{sC}, v{src+i}")
            for i in range(4): seg.e(f"v_cvt_pk_bf16_f32 v{dst+i}, v{src+2*i}, v{src+2*i+1}")
    for q in range(4):
        for d in range(4):
            dst = vQ + 16*q + 4*d
            seg.e(f"v_permlane32_swap_b32 v{dst}, v{dst+2}"); seg.e(f"v_permlane32_swap_b32 v{dst+1}, v{dst+3}")
    for q in range(4):
        for d in range(4):
            dst = vQ + 16*q + 4*d
            seg.e(f"v_permlane16_swap_b32 v{dst}, v{dst+2}"); seg.e(f"v_permlane16_swap_b32 v{dst+1}, v{dst+3}")

def o_epilogue(seg):
    for q in range(4): seg.e(f"v_rcp_f32 v{vT+q}, v{vL+4*q}")
    for q in range(4):
        if q == 3:
            seg.e(f"s_cmp_eq_u32 s{sW}, 3"); seg.e("s_cbranch_scc1 L1_epi_done")
        for m in range(4):
            tb = vS + 8*m; pb = vP + 4*m
            for i in range(8): seg.e(f"v_accvgpr_read_b32 v{tb+i}, a{32*q+8*m+i}")
            for i in range(8): seg.e(f"v_mul_f32 v{tb+i}, v{vT+q}, v{tb+i}")
            for i in range(4): seg.e(f"v_cvt_pk_bf16_f32 v{pb+i}, v{tb+2*i}, v{tb+2*i+1}")
            seg.e(f"buffer_store_dwordx4 {R('v',pb)}, v{vST}, s[16:19], s{sSO+q} offen offset:{1024*m}{' nt' if OPT.o_store_nt else ''}")
    seg.e("L1_epi_done:")

def fallback(segs):
    a, b, c, d, e_ = segs
    tK, tV, vko, vvo = vV, vV + 16, vT + 8, vT + 9
    a.e("L1_fb:")
    a.e(f"""s_lshl_b32 s52, s30, 5
    s_lshl_b32 s53, s31, 1
    s_add_u32 s52, s52, s53
    s_add_u32 s52, s52, s{sHH}
    s_lshl_b32 s52, s52, 18
    s_add_u32 s60, s22, s52
    s_addc_u32 s61, s23, 0
    s_mov_b32 s62, 0x40000
    s_mov_b32 s63, 0x20000
    s_add_u32 s64, s24, s52
    s_addc_u32 s65, s25, 0
    s_mov_b32 s66, 0x40000
    s_mov_b32 s67, 0x20000
    v_and_b32 v{vT}, 15, v{vLANE}
    v_lshrrev_b32 v{vT+1}, 4, v{vLANE}
    v_lshlrev_b32 v{vko}, 8, v{vT}
    v_lshl_add_u32 v{vko}, v{vT+1}, 4, v{vko}
    v_lshlrev_b32 v{vvo}, 10, v{vT+1}
    v_lshl_add_u32 v{vvo}, v{vT}, 1, v{vvo}
    s_mov_b32 s54, 0""")
    for q in range(4): a.e(f"v_mov_b32 v{vT+q}, 0xff800000")
    b.e("L1_fb1:")
    for dd in range(4): b.e(f"buffer_load_dwordx4 {R('v', tK+4*dd)}, v{vko}, s[60:63], s54 offen offset:{64*dd}")
    b.e("s_waitcnt vmcnt(0)")
    for q in range(4):
        s = vS + 8*q
        for dd in range(4):
            b.e(f"{MF} {R('v',s)}, {R('v', tK+4*dd)}, {R('v', vQ+16*q+4*dd)}, {'0' if dd == 0 else R('v',s)}")
    for q in range(4):
        s = vS + 8*q
        b.e(f"v_max3_f32 v{vT+q}, v{vT+q}, v{s}, v{s+1}"); b.e(f"v_max3_f32 v{vT+q}, v{vT+q}, v{s+2}, v{s+3}")
    b.e("s_add_u32 s54, s54, 4096\ns_cmp_lt_u32 s54, 0x40000\ns_cbranch_scc1 L1_fb1")
    for q in range(4): lane_max4(c, vT + q, vT + 4 + q)
    for q in range(4):
        for i in range(4): c.e(f"v_sub_f32 v{vNM+4*q+i}, 0, v{vT+q}")
    for i in range(128): c.e(f"v_accvgpr_write_b32 a{i}, 0")
    for i in range(16): c.e(f"v_mov_b32 v{vL+i}, 0")
    c.e("s_mov_b32 s54, 0")
    d.e("L1_fb2:")
    d.e("s_add_u32 s55, s54, 4096")
    for kt in range(2):
        for dd in range(4): d.e(f"buffer_load_dwordx4 {R('v', tK+4*dd)}, v{vko}, s[60:63], s{54+kt} offen offset:{64*dd}")
        d.e("s_waitcnt vmcnt(0)")
        for q in range(4):
            s = vS + 8*q + 4*kt
            for dd in range(4):
                d.e(f"{MF} {R('v',s)}, {R('v', tK+4*dd)}, {R('v', vQ+16*q+4*dd)}, {R('v', vNM+4*q) if dd == 0 else R('v',s)}")
        d.e("s_nop 7")
    for i in range(32): d.e(f"v_exp_f32 v{vS+i}, v{vS+i}")
    for i in range(16): d.e(f"v_cvt_pk_bf16_f32 v{vP+i}, v{vS+2*i}, v{vS+2*i+1}")
    for dt in range(8):
        for j in range(8):
            op = "buffer_load_short_d16_hi" if j & 1 else "buffer_load_short_d16"
            d.e(f"{op} v{tV+j//2}, v{vvo}, s[64:67], s{54+(j>>2)} offen offset:{256*(j&3)+32*dt}")
        d.e("s_waitcnt vmcnt(0)")
        for q in range(4):
            o = 32*q + 4*dt
            d.e(f"{MF} {R('a',o)}, {R('v',tV)}, {R('v', vP+4*q)}, {R('a',o)}")
        d.e("s_nop 7")
    for q in range(4): d.e(f"{MF} {R('v', vL+4*q)}, {R('v', vONE)}, {R('v', vP+4*q)}, {R('v', vL+4*q)}")
    d.e("s_add_u32 s54, s54, 8192\ns_cmp_lt_u32 s54, 0x40000\ns_cbranch_scc1 L1_fb2")
    e_.e("s_nop 7\ns_branch L1_epi")

def kernel1():
    NPRE = 7 if OPT.prefetch_code else 0
    pro = Seg()
    pro.e(f"""attn_kernel:
    s_cmp_ge_u32 s2, 256
    s_cbranch_scc1 L1_end
    s_load_dwordx4 s[20:23], s[0:1], 0
    s_load_dwordx4 s[24:27], s[0:1], 16
    s_load_dwordx2 s[28:29], s[0:1], 56
    v_lshrrev_b32 v{vT}, 6, v0
    v_and_b32 v{vLANE}, 63, v0
    v_readfirstlane_b32 s{sW}, v{vT}
    s_and_b32 s52, s2, 7
    s_lshr_b32 s53, s2, 3
    s_lshr_b32 s30, s52, 1
    s_lshl_b32 s30, s30, 2
    s_lshr_b32 s54, s53, 3
    s_add_u32 s30, s30, s54
    s_and_b32 s31, s52, 1
    s_lshl_b32 s31, s31, 3
    s_and_b32 s54, s53, 7
    s_add_u32 s31, s31, s54
    s_mul_i32 s{sWOFF}, s{sW}, {4*GS}
    s_and_b32 s55, s{sW}, 1
    s_lshr_b32 s56, s{sW}, 1""")
    stamp(pro, 0)
    pro.e(f"""v_and_b32 v{vT}, 15, v{vLANE}
    v_lshrrev_b32 v{vT+1}, 4, v{vLANE}
    v_lshlrev_b32 v{vST}, 4, v{vLANE}""")
    pro.e(f"""v_and_b32 v{vT+2}, 1, v{vT+1}
    v_lshlrev_b32 v{vT+2}, 17, v{vT+2}
    v_lshrrev_b32 v{vT+3}, 1, v{vT+1}
    v_lshl_add_u32 v{vT+2}, v{vT+3}, 15, v{vT+2}
    v_lshl_add_u32 v{vT+2}, v{vT}, 4, v{vT+2}
    s_lshl_b32 s57, s55, 16
    s_lshl_b32 s58, s56, 8
    s_add_u32 s57, s57, s58
    v_add_u32 v{vF}, s57, v{vT+2}""")
    for i in range(1, 4): pro.e(f"v_add_u32 v{vF+i}, {(8192-GS)*i}, v{vF}")
    pro.e(f"""v_lshrrev_b32 v{vT+2}, 3, v{vLANE}
    v_mul_u32_u24 v{vT+2}, 1280, v{vT+2}
    v_and_b32 v{vT+3}, 7, v{vLANE}
    v_xor_b32 v{vT+3}, v{vT+3}, v{vT+1}
    v_lshl_add_u32 v{vXF}, v{vT+3}, 4, v{vT+2}
    v_xor_b32 v{vT+3}, 4, v{vT+3}
    v_lshl_add_u32 v{vXF+1}, v{vT+3}, 4, v{vT+2}
    v_add_u32 v{vXF+2}, {9216*2}, v{vXF}
    v_add_u32 v{vXF+3}, {9216*3}, v{vXF+1}
    v_add_u32 v{vXF+1}, {9216}, v{vXF+1}
    s_waitcnt lgkmcnt(0)""")
    pro.e(f"""s_lshl_b32 s57, s31, 9
    s_add_u32 s4, s26, s57
    s_addc_u32 s5, s27, 0
    s_sub_u32 s6, {640*8192}, s57
    s_mov_b32 s7, 0x20000
    s_mul_i32 s57, s30, 240
    s_lshl_b32 s58, s{sW}, 6
    s_add_u32 s57, s57, s58
    s_mul_i32 s57, s57, 1280
    s_add_u32 s12, s20, s57
    s_addc_u32 s13, s21, 0
    s_sub_u32 s14, {16*240*1280}, s57
    s_mov_b32 s15, 0x20000
    s_mov_b32 s{sFO}, 0
    s_mov_b32 s{sXO}, 0
    s_mov_b32 s{sXH}, 40960
    s_lshl_b32 s{sXM}, s{sW}, 13
    s_add_u32 s{sXM}, s{sXM}, {XB}
    s_cmp_eq_u32 s{sW}, 3
    s_cbranch_scc1 L1_w3""")
    paths = []
    common1 = Seg(); epi = Seg(); chk = Seg(); q2 = Seg(); hdisp = Seg()
    var = {}
    for nq in (4, 3):
        L = f"L1v{nq}"
        p2 = Seg()
        if nq == 3: p2.e("L1_w3:")
        def wfill(e):
            p2.e(f"s_add_u32 m0, s{sWOFF}, {SLOT*e}")
            p2.e(f"s_mov_b32 s{52+e}, {262144*e}")
            for i in range(4): p2.e(ring_dma(i).replace(f"s{sFO} offen", f"s{52+e} offen").replace("nt ", "nt " if OPT.nt_w else ""))
        def xfill(n):
            for i in range(2*nq):
                if i % 4 == 0: p2.e(f"s_add_u32 m0, s{sXM}, {XBUF*n + 1024*i}")
                t = x_dma(i)
                if n == 1: t = t.replace(f"s{sXO} offen", "s58 offen").replace(f"s{sXH} offen", "s59 offen")
                p2.e(t)
        wfill(0); xfill(0)
        p2.e("s_mov_b32 s58, 128\ns_mov_b32 s59, %d" % (40960 + 128))
        wfill(1); xfill(1)
        if NPRE:
            p2.e(f"""s_getpc_b64 s[60:61]
            {L}_pc:
            s_sub_u32 s60, s60, {L}_pc-attn_kernel
            s_subb_u32 s61, s61, 0
            s_mov_b32 s62, L1_fb-attn_kernel
            s_mov_b32 s63, 0x20000
            v_lshlrev_b32 v{vT+2}, 4, v0""")
            for i in range(NPRE):
                p2.e(f"s_mov_b32 s64, {4096*i}")
                p2.e(f"buffer_load_dword v{vONE}, v{vT+2}, s[60:63], s64 offen")
        for e in range(2, 6): wfill(e)
        p2.e(f"""s_lshl_b32 s57, s30, 5
        s_lshl_b32 s58, s31, 1
        s_add_u32 s57, s57, s58
        s_lshl_b32 s57, s57, 18
        s_cmp_ge_u32 s{sW}, 2
        s_cselect_b32 s8, s24, s22
        s_cselect_b32 s9, s25, s23
        s_add_u32 s8, s8, s57
        s_addc_u32 s9, s9, 0
        s_sub_u32 s8, s8, {KVBIAS}
        s_subb_u32 s9, s9, 0
        s_mov_b32 s10, {524288 + KVBIAS}
        s_mov_b32 s11, 0x20000
        s_mul_i32 s57, s30, 15
        s_lshl_b32 s58, s{sW}, 2
        s_add_u32 s57, s57, s58
        s_lshl_b32 s57, s57, 17
        s_lshl_b32 s58, s31, 13
        s_add_u32 s57, s57, s58
        s_add_u32 s16, s28, s57
        s_addc_u32 s17, s29, 0
        s_mov_b32 s18, {4*131072}
        s_mov_b32 s19, 0x20000
        s_mov_b32 s{sRD}, 0
        s_mov_b32 s{sFV}, {262144*6}
        s_mov_b32 s{sFS}, 262144
        s_mov_b32 s{sFL}, {262144*19}
        s_mov_b32 s{sXO}, 128
        s_mov_b32 s{sXH}, {40960+128}
        s_mov_b32 s{sXD}, {XBUF}
        s_mov_b32 s{sCNT}, 0
        s_mov_b32 s{sHH}, 0
        s_mov_b32 s{sC}, {hex(f2u(math.log2(math.e) / math.sqrt(128.0)))}
        s_mov_b32 s{sTHR}, {hex(f2u(2.0**60))}
        s_and_b32 s55, s{sW}, 1""")
        for q in range(4): p2.e(f"s_mov_b32 s{sSO+q}, {131072*q}")
        p2.e(f"""v_lshlrev_b32 v{vT+2}, 11, v{vT+1}
        v_lshl_add_u32 v{vT+2}, v{vT}, 4, v{vT+2}
        s_lshl_b32 s57, s55, 10
        v_add_u32 v{vFKV+3}, s57, v{vT+2}""")
        for i in range(3): p2.e(f"v_add_u32 v{vFKV+i}, {(GS-256)*(3-i)}, v{vFKV+3}")
        p2.e(f"""v_and_b32 v{vT+2}, 7, v{vT}
        v_mul_u32_u24 v{vT+2}, {GS}, v{vT+2}
        v_lshrrev_b32 v{vT+3}, 3, v{vT}
        v_lshl_add_u32 v{vT+2}, v{vT+3}, 8, v{vT+2}
        v_lshl_add_u32 v{vKB}, v{vT+1}, 4, v{vT+2}""")
        p2.e(f"""v_bfe_u32 v{vT+2}, v{vLANE}, 2, 3
        v_mul_u32_u24 v{vT+2}, {GS}, v{vT+2}
        v_lshrrev_b32 v{vT+3}, 5, v{vLANE}
        v_lshl_add_u32 v{vT+2}, v{vT+3}, 8, v{vT+2}
        v_and_b32 v{vT+3}, 3, v{vLANE}
        v_lshl_add_u32 v{vVB}, v{vT+3}, 3, v{vT+2}
        v_mov_b32 v{vVA}, v{vVB}""")
        p2.e(f"""v_lshrrev_b32 v{vT+2}, 1, v{vT}
        v_xor_b32 v{vT+2}, v{vT+2}, v{vT+1}
        v_lshlrev_b32 v{vT+3}, 7, v{vT}
        v_add_u32 v{vT+3}, s{sXM}, v{vT+3}
        v_lshl_add_u32 v{vXR}, v{vT+2}, 4, v{vT+3}
        v_xor_b32 v{vT+2}, 4, v{vT+2}
        v_lshl_add_u32 v{vXR+1}, v{vT+2}, 4, v{vT+3}""")
        for i in range(128, 256): p2.e(f"v_mov_b32 v{i}, 0")
        for i in range(128, 256): p2.e(f"v_accvgpr_write_b32 a{i}, 0")
        p2.e("s_waitcnt vmcnt(@x,1)")
        p2.e("s_barrier")
        stamp(p2, 1)
        for q in range(nq): p2.e(xread(0, q, 0))
        for f in range(16): p2.e(wread(f, 0)); p2.e(wread(f, 1))
        p2.e(f"v_add_u32 v{vXR}, {XBUF}, v{vXR}")
        wl = Seg(); sw = Seg(); wb = Seg(); wlast = Seg()
        wl.e(".p2align 4\n" + f"{L}_wloop:\ns_cmp_lg_u32 s{sCNT}, 7\ns_cbranch_scc1 {L}_nosw")
        sw.e(f"""s_mov_b32 s4, s8
        s_mov_b32 s5, s9
        s_mov_b32 s6, s10
        s_mov_b32 s{sFS}, 8192
        s_mov_b32 s{sFL}, 524288
        s_cmp_ge_u32 s{sW}, 2
        s_cselect_b32 s{sFV}, -8192, 0""")
        for i in range(4): sw.e(f"v_mov_b32 v{vF+i}, v{vFKV+i}")
        wb.e(f"{L}_nosw:")
        w_step(wb, nq, 0)
        w_step(wb, nq, 1, loop_tail=[f"s_add_u32 s{sCNT}, s{sCNT}, 1", f"s_cmp_lt_u32 s{sCNT}, 9", f"s_cbranch_scc1 {L}_wloop"])
        w_step(wlast, nq, 0)
        w_step(wlast, nq, 1, last=True, xfill=False)
        wlast.e("s_branch L1_q1")
        kf = Seg(); kb = Seg(); kt = Seg()
        kf.e(f"{L}_head:")
        kv_first(kf, nq)
        kf.e(f"s_mov_b32 s{sCNT}, 0")
        kb.e(".p2align 6\n" + f"{L}_kloop:")
        kv_emit(kb, nq, "body", loop_tail=[f"s_add_u32 s{sCNT}, s{sCNT}, 1", f"s_cmp_lt_u32 s{sCNT}, 31", f"s_cbranch_scc1 {L}_kloop"])
        kv_emit(kt, nq, "tail")
        kt.e("s_branch L1_chk")
        var[nq] = (p2, wl, sw, wb, wlast, kf, kb, kt)
    common1.e("L1_q1:")
    stamp(common1, 2)
    for i in range(4): common1.e(f"v_mov_b32 v{vONE+i}, 0x3f803f80")
    q_convert(common1, 0)
    hdisp.e("L1_head:")
    if OPT.stamp:
        hdisp.e(f"s_cmp_eq_u32 s{sHH}, 0\ns_cbranch_scc0 L1_st3"); stamp(hdisp, 3); hdisp.e("L1_st3:"); stamp(hdisp, 5)
    hdisp.e(f"s_cmp_eq_u32 s{sW}, 3\ns_cbranch_scc1 L1v3_head\ns_branch L1v4_head")
    chk.e("L1_chk:")
    if OPT.stamp:
        chk.e(f"s_cmp_eq_u32 s{sHH}, 0\ns_cbranch_scc0 L1_st4"); stamp(chk, 4); chk.e("L1_st4:"); stamp(chk, 6)
    for q in range(4):
        chk.e(f"v_cmp_nlt_f32 s[{52+2*q}:{53+2*q}], v{vL+4*q}, s{sTHR}")
    chk.e("""s_or_b64 s[52:53], s[52:53], s[54:55]
    s_or_b64 s[56:57], s[56:57], s[58:59]
    s_or_b64 s[52:53], s[52:53], s[56:57]
    s_cbranch_scc1 L1_fb""")
    epi.e("L1_epi:")
    o_epilogue(epi)
    epi.e(f"s_cmp_eq_u32 s{sHH}, 1\ns_cbranch_scc1 L1_fin")
    q2.e(f"s_mov_b32 s{sHH}, 1")
    for q in range(4): q2.e(f"s_add_u32 s{sSO+q}, s{sSO+q}, 4096")
    q_convert(q2, 1)
    q2.e("s_branch L1_head")
    fin = Seg()
    fin.e("L1_fin:")
    if OPT.stamp:
        fin.e("s_waitcnt vmcnt(0)")
        stamp(fin, 7)
        fin.e(f"""s_memrealtime s[86:87]
        s_waitcnt lgkmcnt(0)
        s_lshl_b32 s52, s2, 2
        s_add_u32 s52, s52, s{sW}
        s_lshl_b32 s52, s52, 6
        s_add_u32 s60, s28, 0x4000000
        s_addc_u32 s61, s29, 0
        s_mov_b32 s62, 0x100000
        s_mov_b32 s63, 0x20000
        v_mov_b32 v{vT}, s52""")
        for i in range(9):
            fin.e(f"v_mov_b32 v{vT+1}, s{70+2*i}")
            fin.e(f"buffer_store_dword v{vT+1}, v{vT}, s[60:63], 0 offen offset:{4*i}")
            fin.e("s_nop 1")
        fin.e("s_waitcnt vmcnt(0)")
    fin.e("L1_end:\ns_endpgm")
    fb = [Seg() for _ in range(5)]
    fallback(fb)
    for nq in (4, 3):
        p2, wl, sw, wb, wlast, kf, kb, kt = var[nq]
        paths.append([pro, p2, wl, wb, wl, wb, wl, sw, wb, wlast, common1, hdisp, kf, kb, kb, kt, chk, epi, q2, hdisp, kf, kb, kb, kt, chk, epi, fin])
        paths.append([kb, kt, chk, fb[0], fb[1], fb[1], fb[2], fb[3], fb[3], fb[4], epi])
    finish(paths)
    vp = []
    for nq in (4, 3):
        p2, wl, sw, wb, wlast, kf, kb, kt = var[nq]
        vp.append([pro, p2] + [wb] * 9 + [wlast, kf] + [kb] * 31 + [kt, epi, kf] + [kb] * 31)
    resolve_vm(vp)
    out = [pro]
    for nq in (4, 3): out += list(var[nq][:5])
    out += [common1, hdisp]
    for nq in (4, 3): out += list(var[nq][5:])
    out += [chk, epi, q2, fin] + fb
    return out

K2_OA = 4 * TILE
K2_ST = K2_OA + 20 * 1024
assert 3 * K2_ST <= 163840
def kernel2():
    vAB, vBB, vAA, vBA, vWF, vOF, vT2 = 2, 3, 4, 5, 6, 10, 16
    FR = 32
    ACC = 96
    sRD2, sFW, sFOo, sM1, sM2, sCN = 32, 33, 34, 35, 36, 37
    def fb_(par, rt): return FR + 28*par + 4*rt
    def fa_(par, n): return FR + 28*par + 20 + 4*n
    def reads(par, m):
        l = []
        for n in range(2):
            for s in range(2):
                l.append(f"ds_read_b64_tr_b16 {R('v', fa_(par,n) + 2*s, 2)}, v{vAA} offset:{TILE*m + 512*s + 32*n}")
        for rt in range(5):
            l.append(f"ds_read_b128 {R('v', fb_(par,rt))}, v{vBA} offset:{K2_OA + 5120*m + 1024*rt}")
        return [l[0], l[1], l[4], l[2], l[3], l[5], l[6], l[7], l[8]]
    def mfs(par):
        return [f"{MF} {R('v', ACC + 4*(2*rt+n))}, {R('v', fa_(par,n))}, {R('v', fb_(par,rt))}, {R('v', ACC + 4*(2*rt+n))}"
                for rt in range(5) for n in range(2)]
    ntw = "nt " if OPT.k2_nt_w else ""; nto = "nt " if OPT.k2_nt_o else ""
    def dmas(slot, sw, sw2, so, so2):
        l = []
        for i in range(8):
            pre = None
            if i == 0: pre = f"s_add_u32 m0, {slot}, s{sM1}"
            if i == 4: pre = f"s_add_u32 m0, m0, {4*GS}"
            l.append((pre, f"buffer_load_dwordx4 v{vWF+(i&3)}, s[4:7], {sw if i < 4 else sw2} offen offset:{GS*(i&3)} {ntw}lds"))
        for rt in range(5):
            pre = None
            if rt == 0: pre = f"s_add_u32 m0, {slot}, s{sM2}"
            if rt == 4: pre = f"s_add_u32 m0, m0, 4096"
            l.append((pre, f"buffer_load_dwordx4 v{vOF+(rt&3)}, s[8:11], {so if rt < 4 else so2} offen offset:{1024*(rt&3)} {nto}lds"))
        return l
    pro = Seg()
    pro.e(f"""oproj_kernel:
    s_cmp_ge_u32 s2, 240
    s_cbranch_scc1 L2_end
    s_load_dwordx4 s[20:23], s[0:1], 32
    s_load_dwordx2 s[24:25], s[0:1], 56
    v_lshrrev_b32 v{vT2}, 6, v0
    v_and_b32 v1, 63, v0
    v_readfirstlane_b32 s3, v{vT2}
    s_and_b32 s40, s2, 7
    s_lshr_b32 s41, s2, 3
    s_mul_i32 s42, s41, 52
    s_lshr_b32 s42, s42, 8
    s_mul_i32 s43, s42, 5
    s_sub_u32 s31, s41, s43
    s_mul_i32 s30, s40, 6
    s_add_u32 s30, s30, s42
    s_mul_i32 s{sM1}, s3, {TILE}
    s_mul_i32 s{sM2}, s3, 5120
    s_add_u32 s{sM2}, s{sM2}, {K2_OA}
    v_and_b32 v{vT2}, 15, v1
    v_lshrrev_b32 v{vT2+1}, 4, v1""")
    pro.e(f"""v_mul_u32_u24 v{vT2+2}, {8*1280}, v{vT2+1}
    v_lshl_add_u32 v{vT2+2}, v{vT2}, 4, v{vT2+2}
    s_mul_i32 s44, s3, {32*1280}
    v_add_u32 v{vWF}, s44, v{vT2+2}""")
    for i in range(1, 4): pro.e(f"v_add_u32 v{vWF+i}, {(1280-GS)*i}, v{vWF}")
    pro.e(f"""v_lshlrev_b32 v{vBB}, 4, v1
    s_lshl_b32 s44, s3, 10
    v_add_u32 v{vOF}, s44, v{vBB}""")
    for i in range(1, 4): pro.e(f"v_add_u32 v{vOF+i}, {(131072-1024)*i}, v{vOF}")
    pro.e(f"""s_waitcnt lgkmcnt(0)
    s_lshl_b32 s44, s31, 8
    s_add_u32 s4, s20, s44
    s_addc_u32 s5, s21, 0
    s_sub_u32 s6, {4096*1280}, s44
    s_mov_b32 s7, 0x20000
    s_mul_i32 s44, s30, {5*131072}
    s_add_u32 s8, s24, s44
    s_addc_u32 s9, s25, 0
    s_mov_b32 s10, {5*131072}
    s_mov_b32 s11, 0x20000""")
    for st in range(3):
        pro.e(f"s_mov_b32 s{46+4*st}, {163840*st}\ns_mov_b32 s{47+4*st}, {163840*st + 5120}\ns_mov_b32 s{48+4*st}, {4096*st}\ns_mov_b32 s{49+4*st}, {4096*st + 4*131072}")
        for pre, d in dmas(str(K2_ST*st), f"s{46+4*st}", f"s{47+4*st}", f"s{48+4*st}", f"s{49+4*st}"):
            if pre: pro.e(pre)
            pro.e(d)
    pro.e(f"""s_mul_i32 s44, s30, {80*1280}
    s_lshl_b32 s45, s31, 8
    s_add_u32 s44, s44, s45
    s_lshl_b32 s45, s3, 6
    s_add_u32 s44, s44, s45
    s_add_u32 s12, s22, s44
    s_addc_u32 s13, s23, 0
    s_sub_u32 s14, {16*240*1280}, s44
    s_mov_b32 s15, 0x20000
    v_bfe_u32 v{vT2+2}, v1, 2, 3
    v_mul_u32_u24 v{vT2+2}, {GS}, v{vT2+2}
    v_lshrrev_b32 v{vT2+3}, 5, v1
    v_lshl_add_u32 v{vT2+2}, v{vT2+3}, 8, v{vT2+2}
    v_and_b32 v{vT2+3}, 3, v1
    v_lshl_add_u32 v{vT2+2}, v{vT2+3}, 3, v{vT2+2}
    s_lshl_b32 s45, s3, 6
    v_add_u32 v{vAB}, s45, v{vT2+2}
    v_mov_b32 v{vAA}, v{vAB}
    v_mov_b32 v{vBA}, v{vBB}
    v_mul_u32_u24 v{vT2+4}, 1280, v{vT2}
    v_lshl_add_u32 v{vT2+4}, v{vT2+1}, 4, v{vT2+4}
    s_mov_b32 s{sRD2}, 0
    s_mov_b32 s{sFW}, {163840*3}
    s_mov_b32 s{sFOo}, {4096*3}
    s_mov_b32 s{sCN}, 0""")
    for i in range(40): pro.e(f"v_mov_b32 v{ACC+i}, 0")
    pro.e("s_waitcnt vmcnt(26)\ns_barrier")
    for r in reads(0, 0): pro.e(r)
    def ksteps(seg, ms, head, fill, vm, loop_tail=None):
        mf = []; sc = {}; ds = {}; va = {}
        for j, (par, rm) in enumerate(ms):
            g0 = len(mf)
            mf += mfs(par)
            if rm is not None:
                rl = reads(1 - par, rm)
                st = g0 + (2 if (head and j == 0) else 0)
                gs = [st, st, st+1, st+2, st+2, st+3, st+4, st+5, st+6]
                for g, r in zip(gs, rl): ds.setdefault(g, []).append(r)
        if head:
            seg.e(f"s_mov_b32 s38, s{sRD2}")
            seg.e(f"s_add_u32 s{sRD2}, s{sRD2}, {K2_ST}\ns_cmp_ge_u32 s{sRD2}, {3*K2_ST}\ns_cselect_b32 s{sRD2}, 0, s{sRD2}")
            seg.e(f"s_waitcnt vmcnt({vm}) lgkmcnt(0)")
            sc.setdefault(0, []).append("s_barrier")
            va.setdefault(0, []).extend([f"v_add_u32 v{vAA}, s{sRD2}, v{vAB}", f"v_add_u32 v{vBA}, s{sRD2}, v{vBB}"])
        if fill:
            sc.setdefault(1, []).extend([f"s_add_u32 s39, s{sFW}, 5120", f"s_add_u32 s40, s{sFOo}, {4*131072}"])
            dl = dmas("s38", f"s{sFW}", "s39", f"s{sFOo}", "s40")
            for k, (pre, d) in enumerate(dl):
                g = 3 + (k * 35) // 13
                if pre: sc.setdefault(g - 1, []).append(pre)
                ds.setdefault(g, []).append(d)
            sc.setdefault(39, []).extend(["s_nop 0", f"s_add_u32 s{sFW}, s{sFW}, 163840", f"s_add_u32 s{sFOo}, s{sFOo}, 4096"])
        seg.gaps(mf, sc, ds, va)
        if loop_tail:
            for o in loop_tail: seg.e(o)
    ksteps(pro, [(0, 1), (1, 2), (0, 3)], False, False, None)
    body = Seg(); t1 = Seg(); t2 = Seg(); t3 = Seg()
    body.e(".p2align 6\nL2_loop:")
    blk = [(1, 0), (0, 1), (1, 2), (0, 3)]
    ksteps(body, blk, True, True, 13, loop_tail=[f"s_add_u32 s{sCN}, s{sCN}, 1", f"s_cmp_lt_u32 s{sCN}, 29", "s_cbranch_scc1 L2_loop"])
    ksteps(t1, blk, True, False, 13)
    ksteps(t2, blk, True, False, 0)
    ksteps(t3, [(1, None)], False, False, None)
    for rt in range(5):
        a = ACC + 8*rt; d = FR + 4*rt
        for i in range(4): t3.e(f"v_cvt_pk_bf16_f32 v{d+i}, v{a+2*i}, v{a+2*i+1}")
    for sw in ("32", "16"):
        for rt in range(5):
            d = FR + 4*rt
            t3.e(f"v_permlane{sw}_swap_b32 v{d}, v{d+2}"); t3.e(f"v_permlane{sw}_swap_b32 v{d+1}, v{d+3}")
    for rt in range(5):
        t3.e(f"s_mov_b32 s{44+rt}, {16*1280*rt}")
        t3.e(f"buffer_store_dwordx4 {R('v', FR+4*rt)}, v{vT2+4}, s[12:15], s{44+rt} offen")
    t3.e("L2_end:\ns_endpgm")
    finish([[pro, body, body, t1, t2, t3]])
    return [pro, body, t1, t2, t3]

HEAD = """; Fused Q-projection + attention (attn_kernel) and output projection (oproj_kernel), bf16 MFMA, gfx950.
; kernarg: x, k_cache, v_cache, wq, wo, out, debug, ws (8-byte pointers)
; @launch kernel=attn_kernel grid=(256,1,1) block=(256,1,1) lds=163840
; @launch kernel=oproj_kernel grid=(240,1,1) block=(256,1,1) lds=163840
.amdgcn_target "amdgcn-amd-amdhsa--gfx950"
.text
"""
def desc(name, nv, acc):
    return f""".p2align 6
.amdhsa_kernel {name}
  .amdhsa_next_free_vgpr {nv}
  .amdhsa_next_free_sgpr 102
  .amdhsa_accum_offset {acc}
  .amdhsa_group_segment_fixed_size 0
  .amdhsa_kernarg_size 64
  .amdhsa_user_sgpr_count 2
  .amdhsa_user_sgpr_kernarg_segment_ptr 1
  .amdhsa_system_sgpr_workgroup_id_x 1
.end_amdhsa_kernel
"""
def build():
    s = HEAD
    for name, k in (("attn_kernel", kernel1), ("oproj_kernel", kernel2)):
        s += f".globl {name}\n.p2align 8\n.type {name},@function\n"
        for seg in k():
            for i in seg:
                s += (i.text if i.kind in ("label", "dir") else "    " + i.text) + "\n"
    s += '.section .rodata,"a"\n' + desc("attn_kernel", 512, 256) + desc("oproj_kernel", 136, 136)
    return s

if __name__ == "__main__":
    out = sys.argv[1]
    for kv in sys.argv[2:]:
        k, v = kv.split("=")
        assert hasattr(OPT, k), k
        setattr(OPT, k, type(getattr(OPT, k))(int(v)))
    open(out, "w").write(build())
```

```python
import re

TRANS = ("v_exp_f32", "v_log_f32", "v_rcp_f32", "v_rsq_f32", "v_sqrt_f32")
_reg = re.compile(r"^(-?)(?:abs\()?([vas])(?:(\d+)|\[(\d+):(\d+)\])\)?$")

def regs_of(tok):
    tok = tok.strip()
    if tok in ("vcc",): return {("s", "vcc")}
    if tok == "m0": return {("s", "m0")}
    if tok == "exec": return {("s", "exec")}
    m = _reg.match(tok)
    if not m: return set()
    f = m.group(2)
    if m.group(3) is not None: return {(f, int(m.group(3)))}
    return {(f, i) for i in range(int(m.group(4)), int(m.group(5)) + 1)}

class I:
    __slots__ = ("text", "op", "kind", "rd", "wr", "srcC", "srcAB", "tag", "dma", "states")
    def __init__(self, text, tag=None):
        self.text = text; self.tag = tag
        t = text.split(";")[0].strip()
        self.rd = set(); self.wr = set(); self.srcC = set(); self.srcAB = set(); self.dma = False
        self.states = 1
        if t.endswith(":"):
            self.op = t; self.kind = "label"; self.states = 0; return
        if t.startswith("."):
            self.op = t; self.kind = "dir"; self.states = 0; return
        parts = t.split(None, 1)
        op = parts[0]; self.op = op
        rest = parts[1] if len(parts) > 1 else ""
        ops = [x.strip() for x in re.split(r",(?![^\[]*\])", rest)] if rest else []
        if ops:
            last = ops[-1].split()
            mods = last[1:]; ops[-1] = last[0] if last else ""
        else:
            mods = []
        R = [regs_of(x) for x in ops]
        if op.startswith("v_mfma"):
            self.kind = "mfma"; self.wr = R[0]; self.srcAB = R[1] | R[2]; self.srcC = R[3]; self.rd = R[1] | R[2] | R[3]
        elif op.startswith("ds_read"):
            self.kind = "ds"; self.wr = R[0]; self.rd = R[1]
        elif op.startswith("ds_write"):
            self.kind = "ds"; self.rd = set().union(*R)
        elif op.startswith("buffer_load"):
            self.kind = "vmem"
            if "lds" in mods:
                self.dma = True; self.rd = set().union(*R) | {("s", "m0")}
            else:
                self.wr = R[0]; self.rd = set().union(*R[1:])
                if "d16" in op: self.rd |= R[0]
        elif op.startswith("buffer_store") or op.startswith("buffer_atomic"):
            self.kind = "vmem"; self.rd = set().union(*R)
        elif op.startswith("buffer_"):
            self.kind = "vmem"
        elif op == "s_waitcnt":
            self.kind = "wait"
        elif op == "s_barrier":
            self.kind = "bar"
        elif op == "s_nop":
            self.kind = "nop"; self.states = int(ops[0], 0) + 1
        elif op.startswith("s_cbranch") or op == "s_branch" or op == "s_endpgm":
            self.kind = "branch"
        elif op.startswith("s_load") or op.startswith("s_mem"):
            self.kind = "smem"; self.wr = R[0]; self.rd = set().union(*R[1:]) if len(R) > 1 else set()
        elif op.startswith("s_cmp") or op in ("s_setprio", "s_sleep"):
            self.kind = "salu"; self.rd = set().union(*R) if R else set()
        elif op.startswith("s_"):
            self.kind = "salu"; self.wr = R[0]; self.rd = set().union(*R[1:]) if len(R) > 1 else set()
            if "saveexec" in op: self.wr |= {("s", "exec")}
        elif op.startswith("v_"):
            self.kind = "trans" if op in TRANS else "valu"
            self.wr = set(R[0]); self.rd = set().union(*R[1:]) if len(R) > 1 else set()
            if "permlane" in op and "swap" in op:
                self.wr = R[0] | R[1]; self.rd = R[0] | R[1]
            if op.startswith("v_writelane"): self.rd |= R[0]
            if op.startswith("v_fmac") or op.startswith("v_dot2c"): self.rd |= R[0]
        else:
            raise ValueError("unknown op: " + text)
        if self.kind in ("salu", "branch"):
            if op.startswith(("s_cselect", "s_addc", "s_subb", "s_cbranch_scc")): self.rd = self.rd | {("x", "scc")}
            if op.startswith(("s_add", "s_sub", "s_and", "s_or", "s_xor", "s_lshl", "s_lshr", "s_max", "s_min", "s_cmp", "s_not", "s_bfe")):
                self.wr = self.wr | {("x", "scc")}
    def __repr__(self): return self.text

def isv(r): return r[0] in ("v", "a")
def mfma_passes(i): return 4 if "16x16x32" in i.op else 8

def need_states(p, c):
    n = 0
    pv = p.kind in ("valu", "trans"); cv = c.kind in ("valu", "trans")
    if pv and c.kind == "mfma" and any(isv(r) for r in p.wr & c.rd): n = max(n, 2)
    if p.kind == "mfma":
        ps = mfma_passes(p); big = {4: 8, 8: 12}[ps]
        if c.kind == "mfma":
            if p.wr & c.srcAB: n = max(n, big)
            if p.wr & c.srcC and not (p.wr == c.srcC and p.op == c.op): n = max(n, {4: 6, 8: 10}[ps])
            if p.wr & c.wr and not (p.wr & c.srcC): n = max(n, 0)
        elif cv or c.kind in ("ds", "vmem"):
            if p.wr & (c.rd | c.wr): n = max(n, big)
        if cv and (p.srcC & c.wr): n = max(n, {4: 3, 8: 7}[ps])
    if p.kind == "trans" and c.kind == "valu" and (p.wr & c.rd): n = max(n, 1)
    if pv and cv:
        w = {r for r in p.wr if isv(r)}
        if w & c.rd:
            if "permlane" in c.op: n = max(n, 2)
            if "readfirstlane" in c.op or "readlane" in c.op: n = max(n, 1)
            if "dpp" in c.text: n = max(n, 2)
        ws = {r for r in p.wr if r[0] == "s"}
        if ws & c.rd: n = max(n, 2)
    if pv and c.kind == "vmem" and {r for r in p.wr if r[0] == "s"} & c.rd: n = max(n, 5)
    if pv and c.kind in ("salu", "branch") and ({r for r in p.wr if r[0] == "s"} & (c.rd | ({("s", "vcc")} if "vcc" in c.op else set()))): n = max(n, 4)
    if p.kind == "salu" and ("s", "m0") in p.wr and c.dma: n = max(n, 1)
    if p.kind == "vmem" and p.op.startswith("buffer_store") and ("x4" in p.op or "x3" in p.op) and (cv or c.kind in ("ds", "vmem", "mfma")):
        if {r for r in p.rd if isv(r)} & c.wr: n = max(n, 2)
    return n

MAXD = 13

def pad_path(segs):
    ins = 0
    hist = []
    for seg in segs:
        k = 0
        while k < len(seg):
            c = seg[k]
            if c.kind not in ("label", "dir"):
                d = 0; short = 0
                for p in reversed(hist):
                    if d >= MAXD: break
                    n = need_states(p, c)
                    if n > d: short = max(short, n - d)
                    d += p.states
                if short:
                    nop = I(f"s_nop {short - 1}")
                    seg.insert(k, nop); hist.append(nop); k += 1; ins += 1
            hist.append(c)
            if len(hist) > 40: hist = hist[-40:]
            k += 1
    return ins

_lg = re.compile(r"lgkmcnt\((\d+)\)")
def lgkm_path(segs, fix=True):
    q = []
    ins = 0
    for seg in segs:
        k = 0
        while k < len(seg):
            c = seg[k]
            if c.kind == "wait":
                m = _lg.search(c.text)
                if m:
                    n = int(m.group(1))
                    if len(q) > n: q = q[len(q) - n:] if n else []
            elif c.kind not in ("label", "dir"):
                touched = c.rd | c.wr
                idx = -1
                for j, p in enumerate(q):
                    if p.wr & touched: idx = j
                if idx >= 0:
                    if not fix: raise RuntimeError(f"missing lgkmcnt before {c.text}")
                    needed = q[idx]
                    pos = k
                    if c.kind == "mfma":
                        j = k - 1
                        while j >= 0 and seg[j].kind not in ("mfma", "label", "branch", "bar") and seg[j] is not needed: j -= 1
                        if j >= 0 and seg[j].kind == "mfma": pos = j + 1
                    later = sum(1 for x in seg[pos:k] if x.kind == "ds")
                    n = len(q) - 1 - idx - later
                    assert n >= 0
                    n = min(n, 15)
                    if pos < len(seg) and seg[pos].kind == "wait" and not _lg.search(seg[pos].text) and pos < k:
                        seg[pos] = I(seg[pos].text + f" lgkmcnt({n})")
                    elif pos < k and seg[pos].kind == "wait" and _lg.search(seg[pos].text):
                        seg[pos] = I(_lg.sub(f"lgkmcnt({min(n, int(_lg.search(seg[pos].text).group(1)))})", seg[pos].text))
                    else:
                        seg.insert(pos, I(f"s_waitcnt lgkmcnt({n})")); k += 1
                    ins += 1
                    keep = n + later
                    q = q[len(q) - keep:] if keep else []
                if c.kind == "ds": q.append(c)
            k += 1
    return ins

class Seg(list):
    def e(self, text, tag=None):
        for t in text.split("\n"):
            t = t.strip()
            if t: self.append(I(t, tag))
    def gaps(self, mf, sc, ds, va):
        for g, m in enumerate(mf):
            if m is not None: self.e(m)
            s = sc.get(g, [])
            for x in s[:1]: self.e(x)
            for x in ds.get(g, []): self.e(x)
            for x in va.get(g, []): self.e(x)
            for x in s[1:]: self.e(x)

def finish(paths):
    for _ in range(10):
        n = 0
        for p in paths: n += lgkm_path(p)
        for p in paths: n += pad_path(p)
        if n == 0: return
    raise RuntimeError("no fixpoint")

_vm = re.compile(r"vmcnt\(@(\w+),(\d+)\)")
def resolve_vm(paths):
    best = {}
    for segs in paths:
        q = []; gid = {}
        for seg in segs:
            for c in seg:
                if c.kind == "vmem" and (not c.op.startswith("buffer_store") or ";cnt" in c.text):
                    m = re.search(r";g (\w+) (\d+)", c.text)
                    if m:
                        cls = m.group(1)
                        if int(m.group(2)) == 0: gid[cls] = gid.get(cls, -1) + 1
                        q.append((cls, gid[cls]))
                    else: q.append((None, 0))
                elif c.kind == "wait":
                    m = _vm.search(c.text)
                    if m:
                        cls, G = m.group(1), int(m.group(2))
                        lim = gid[cls] - G
                        idx = [i for i, (k, g) in enumerate(q) if k == cls and g <= lim]
                        n = len(q) - 1 - max(idx) if idx else 63
                        best[id(c)] = (c, min(n, best.get(id(c), (c, 63))[1]))
    for c, n in best.values():
        c.text = _vm.sub(f"vmcnt({n})", c.text)


def _cost(i):
    if i.kind == "trans": return 8
    if i.kind == "vmem": return 10
    if i.kind == "bar": return 28
    if i.kind == "ds" and i.op.startswith("ds_write"): return 8
    return 4

def _lat(p, c, raw):
    n = 4 * (need_states(p, c) + 1)
    if raw:
        if p.kind == "ds" and p.wr: n = max(n, 160)
        if p.kind == "mfma": n = max(n, 16 if c.kind == "mfma" and p.wr == c.srcC else 40)
        if p.kind == "trans": n = max(n, 12)
        if p.kind == "valu": n = max(n, 8)
    return n

def lsched(prog, dma_gap=56, verbose=None):
    prog = [i for i in prog if i.kind != "nop"]
    n = len(prog)
    RD = [set(i.rd) for i in prog]; WR = [set(i.wr) for i in prog]
    EP = ("x", "epoch")
    for k, i in enumerate(prog):
        assert i.kind not in ("label", "dir", "branch"), i.text
        if (i.kind == "ds" and ";free" not in i.text) or i.dma: RD[k].add(EP)
        if i.kind in ("bar", "wait"): WR[k].add(EP)
        if i.kind in ("smem",): WR[k].add(EP)
    preds = [dict() for _ in range(n)]
    lastw = {}; readers = {}
    last = {}
    for k, i in enumerate(prog):
        def dep(j, lat): preds[k][j] = max(preds[k].get(j, 0), lat)
        for r in RD[k]:
            if r in lastw: dep(lastw[r], _lat(prog[lastw[r]], i, True) if r != EP else _cost(prog[lastw[r]]))
        for r in WR[k]:
            if r in lastw: dep(lastw[r], _lat(prog[lastw[r]], i, False))
            for j in readers.get(r, []):
                if j != k:
                    lat = _lat(prog[j], i, False)
                    if r == EP and prog[j].kind == "ds" and i.kind == "wait" and "lgkm" in i.text: lat = 140
                    dep(j, lat)
        cls = i.kind if i.kind in ("mfma", "vmem") else None
        if cls in last: dep(last[cls], {"mfma": 16, "vmem": dma_gap, "ds": 4}[cls])
        if cls: last[cls] = k
        for r in RD[k]: readers.setdefault(r, []).append(k)
        for r in WR[k]: lastw[r] = k; readers[r] = []
    succs = [[] for _ in range(n)]
    for k in range(n):
        for j, l in preds[k].items(): succs[j].append((k, l))
    prio = [0] * n
    for k in reversed(range(n)):
        prio[k] = max([l + prio[j] for j, l in succs[k]], default=0) + 0
    npred = [len(p) for p in preds]
    ready_t = [0] * n
    avail = {k for k in range(n) if npred[k] == 0}
    out = []; t = 0; vec_free = 0; last_mf = -100; last_valu_end = -100
    def start(k):
        i = prog[k]
        s = max(t, ready_t[k])
        if i.kind in ("mfma", "valu", "trans", "ds", "vmem"): s = max(s, vec_free)
        if i.kind in ("ds", "vmem"): s = max(s, last_valu_end + 8)
        return s
    while avail:
        mf = [k for k in avail if prog[k].kind == "mfma"]
        tm = start(mf[0]) if mf else None
        cand = []
        for k in avail:
            if prog[k].kind == "mfma": continue
            s = start(k)
            cand.append((s, k))
        pick = None
        now = [(s, k) for s, k in cand if s <= t]
        soon = [(s, k) for s, k in cand if s <= max(t, vec_free)]
        if tm is not None and tm <= t: pick = mf[0]
        else:
            def fits(s, k): return tm is None or s + _cost(prog[k]) <= tm + 3 or prio[k] > prio[mf[0]] + 24
            pool = [(s, k) for s, k in now if fits(s, k)] or [(s, k) for s, k in soon if fits(s, k)]
            if pool:
                mem = [(s, k) for s, k in pool if prog[k].kind in ("ds", "vmem")]
                pick = max(mem or pool, key=lambda x: (prio[x[1]], -x[1]))[1]
            else:
                allc = cand + ([(tm, mf[0])] if mf else [])
                allc = [(s, k) for s, k in allc if prog[k].kind == "mfma" or fits(s, k)] or allc
                pick = min(allc, key=lambda x: (x[0], -prio[x[1]]))[1]
        s = start(pick); i = prog[pick]
        out.append(i); avail.remove(pick)
        if i.kind == "mfma": t = s + 4; vec_free = s + 8; last_mf = s
        else:
            t = s + _cost(i)
            if i.kind in ("valu", "trans"): last_valu_end = t
        for j, l in succs[pick]:
            ready_t[j] = max(ready_t[j], s + l); npred[j] -= 1
            if npred[j] == 0: avail.add(j)
    assert len(out) == n
    if verbose: print(f"lsched {verbose}: {n} instrs, {sum(1 for i in prog if i.kind == 'mfma')} mfma, est {t} cycles")
    return out
```

```python
import sys, struct, math
from ir import I, Seg, finish, resolve_vm, lsched

def f2u(x): return struct.unpack("<I", struct.pack("<f", x))[0]
MF = "v_mfma_f32_16x16x32_bf16"
def R(f, b, n=4): return f"{f}[{b}:{b+n-1}]"

class Opt:
    nt_w = True
    nt_kv = True
    itstamp = 0
    lead = 3
    rot = 1
    skew = 1
    verbose = 0
    k2_nomfma = 0
    k2_twice = 0
    ostore = 2
    pf_wo = 1
    stamp = False
    prefetch_code = True
    k2_nt_o = False
    k2_nt_w = False
OPT = Opt()

GS = 1056; TILE = 8 * GS; SLOT = 2 * TILE; NSLOT = 6
XB = NSLOT * SLOT; XBUF = 30720
assert XB + 2 * XBUF <= 163840
KVBIAS = 3 * (GS - 256)
OH = 240 * 4096
WSTEP = 32 * 8192
vLANE, vKB, vVB, vKA, vVA = 1, 2, 3, 4, 5
vF, vFKV, vXF, vXR, vST = 6, 10, 14, 18, 20
vT = 21
vSW = 18
vK, vV, vONE, vL = 32, 64, 96, 100
vQ, vS, vP, vNM = 128, 192, 224, 240
TSET = (116, 10)
PSET = (124, 28)
sW = 3
sRD, sFP, sWOFF, sFV, sFS, sFL, sFO, sTMP = 32, 33, 34, 35, 36, 37, 38, 39
sXO, sXH, sXM, sXD, sCNT, sHH, sC, sTHR = 40, 41, 42, 43, 44, 45, 46, 47
sSO = 48
sWRAP = 68

def stamp(seg, idx):
    if OPT.stamp:
        seg.e(f"s_memtime s[{70+2*idx}:{71+2*idx}]")
        seg.e("s_waitcnt lgkmcnt(0)")

def ring_dma(i, nt=None):
    nt = OPT.nt_kv if nt is None else nt
    return f"buffer_load_dwordx4 v{vF+i}, s[4:7], s{sFO} offen offset:{GS*i} {'nt ' if nt else ''}lds ;g ring {i}"
def x_dma(i):
    so = sXO if i < 4 else sXH
    return f"buffer_load_dwordx4 v{vXF+(i&3)}, s[12:15], s{so} offen offset:{1024*(i&3)} {'nt ' if OPT.nt_w else ''}lds ;g x {i}"
def rd_adv():
    return [f"s_add_u32 s{sRD}, s{sRD}, {SLOT}", f"s_cmp_ge_u32 s{sRD}, {NSLOT*SLOT}", f"s_cselect_b32 s{sRD}, 0, s{sRD}"]
def fill_next(wrap):
    l = [f"s_add_u32 m0, s{sFP}, s{sWOFF}",
         f"s_max_i32 s{sTMP}, s{sFV}, 0",
         f"s_min_i32 s{sFO}, s{sTMP}, s{sFL}",
         f"s_add_u32 s{sFP}, s{sFP}, {SLOT}", f"s_cmp_ge_u32 s{sFP}, {NSLOT*SLOT}", f"s_cselect_b32 s{sFP}, 0, s{sFP}",
         f"s_add_i32 s{sFV}, s{sFV}, s{sFS}"]
    if wrap: l += [f"s_cmp_ge_i32 s{sFV}, s{sWRAP}", f"s_cselect_b32 s{sFV}, 0, s{sFV}"]
    return l
def x_adv():
    return [f"s_add_u32 s{sXO}, s{sXO}, 128", f"s_cmp_ge_u32 s{sXO}, 1280", f"s_cselect_b32 s{sXO}, 0, s{sXO}", f"s_add_u32 s{sXH}, s{sXO}, 40960"]

def acc_reg(hh, q, dt): return ("v", 128 + 32*q + 4*dt) if hh == 0 else ("a", 128 + 32*q + 4*dt)
def wmf(f, q, par):
    t, b = acc_reg(f >> 3, q, f & 7)
    return f"{MF} {R(t,b)}, {R('a',4*f)}, {R('a',64+16*par+4*q)}, {R(t,b)}"
def wread(f, s):
    hh, dt = f >> 3, f & 7
    return f"ds_read_b64_tr_b16 {R('a', 4*f + 2*s, 2)}, v{vVA} offset:{TILE*hh + 512*s + 32*dt}"
def xread(par, q, ks): return f"ds_read_b128 {R('a', 64 + 16*par + 4*q)}, v{vXR+ks} offset:{2048*q}"
def kread(f): return f"ds_read_b128 {R('v', vK + 4*f)}, v{vKA} offset:{512*(f>>2) + 64*(f&3)}"
def vread(dt, s): return f"ds_read_b64_tr_b16 {R('v', vV + 4*dt + 2*s, 2)}, v{vVA} offset:{TILE + 512*s + 32*dt}"

def w_step(seg, nq, par, tail):
    N = 16 * nq
    mf = [wmf(f, q, par) for f in range(16) for q in range(nq)]
    sc, ds, va = {}, {}, {}
    for g, o in zip((2, 3, 4), rd_adv()): sc.setdefault(g, []).append(o)
    va.setdefault(5, []).append(f"v_add_u32 v{vVA}, s{sRD}, v{vVB}")
    sc.setdefault(7, []).append(f"s_waitcnt vmcnt(@ring,{OPT.lead-2}) lgkmcnt(0)")
    sc.setdefault(8, []).append("s_barrier")
    fn = fill_next(True)
    for g, o in zip((5, 6, 9, 10, 11, 12, 13, 14, 15), fn): sc.setdefault(g, []).append(o)
    busy = {8}
    gl = 9
    for f in range(16):
        gl = max(gl, nq*f + nq - 1)
        ds.setdefault(gl, []).extend([wread(f, 0), wread(f, 1)]); busy.add(gl); gl += 1
    assert gl <= N
    def free_from(g):
        while g in busy: g += 1
        busy.add(g); return g
    ndma = 4 + (2*nq if par == 1 else 0)
    span = (N - 10 - 12) // ndma
    g = 12; gg = 0
    for i in range(4):
        gg = free_from(max(g, gg + 2)); ds.setdefault(gg, []).append(ring_dma(i, OPT.nt_w)); g += span
    if par == 1:
        for i in range(2*nq):
            gg = free_from(max(g, gg + 2))
            if i == 0: sc.setdefault(gg - 1, []).append(f"s_mov_b32 m0, s{sXM}")
            if i == 4: sc.setdefault(gg - 1, []).append(f"s_add_u32 m0, s{sXM}, 4096")
            ds.setdefault(gg, []).append(x_dma(i)); g += span
        assert gg < N - 4, gg
    g = N - 12
    if par == 1: sc.setdefault(g - 1, []).append("s_waitcnt vmcnt(@x,1)")
    for q in range(nq):
        gg = free_from(g); ds.setdefault(gg, []).append(xread(1 - par, q, 1 - par)); g = gg + 1
    assert gg < N - 4
    gv = free_from(gg + 1)
    if par == 0:
        va.setdefault(gv, []).append(f"v_add_u32 v{vXR+1}, s{sXD}, v{vXR+1}")
        for g, o in zip((18, 19, 20, 21), x_adv()): sc.setdefault(g, []).append(o)
    else:
        va.setdefault(gv, []).append(f"v_subrev_u32 v{vXR}, s{sXD}, v{vXR}")
        assert gv <= N - 3
        sc.setdefault(N - 4, []).append(f"s_add_u32 s{sXM}, s{sXM}, s{sXD}")
        sc.setdefault(N - 3, []).extend(["s_nop 0", f"s_sub_u32 s{sXD}, 0, s{sXD}"] if gv == N - 3 else [f"s_sub_u32 s{sXD}, 0, s{sXD}"])
    for j, o in enumerate(tail[:-1]): sc.setdefault(N - len(tail) + 1 + j, []).append(o)
    seg.gaps(mf, sc, ds, va)
    if tail: seg.e(tail[-1])

def w_last(p, nq):
    for o in rd_adv(): p.e(o)
    p.e(f"s_waitcnt vmcnt(@ring,{OPT.lead-2}) lgkmcnt(0)\ns_barrier")
    p.e(f"v_add_u32 v{vVA}, s{sRD}, v{vVB}")
    for q in range(nq): p.e(xread(1, q, 1))
    def blk(hh, par, reload, qmajor=False):
        if qmajor:
            for q in range(nq):
                for dt in range(8): p.e(wmf(8*hh + dt, q, par))
        else:
            for dt in range(8):
                for q in range(nq): p.e(wmf(8*hh + dt, q, par))
                if reload: p.e(wread(8*hh + dt, 0)); p.e(wread(8*hh + dt, 1))
    for e in range(7 - OPT.lead):
        for o in fill_next(False): p.e(o)
        for i in range(4): p.e(ring_dma(i))
    if OPT.skew: blk(0, 0, True); blk(0, 1, False, True); blk(1, 0, True)
    else: blk(0, 0, True); blk(1, 0, True); blk(0, 1, False, True)
    for o in rd_adv(): p.e(o)
    p.e("s_waitcnt vmcnt(@ring,4) lgkmcnt(0)\ns_barrier")
    p.e(f"v_add_u32 v{vKA}, s{sRD}, v{vKB}")
    for f in range(8): p.e(kread(f))
    for o in fill_next(False)[:3] + fill_next(False)[6:]: p.e(o)
    for i in range(4): p.e(ring_dma(i))
    blk(1, 1, False)

def kv_sched(nq):
    if nq == 4: order = [("S",0),("P",2),("S",1),("P",3),("S",2),("P",0),("S",3),("P",1)]; wrapped = (2, 3)
    else: order = [("S",0),("P",1),("S",1),("P",2),("S",2),("P",0)]; wrapped = (1, 2)
    mf = []; pos = {}
    for k, q in order:
        pos[(k, q)] = len(mf)
        if k == "S":
            for kt in range(2):
                s = vS + 8*q + 4*kt
                for d in range(4):
                    c = R('v', vNM + 4*q) if d == 0 else R('v', s)
                    mf.append(("S", q, d == 0, f"{MF} {R('v',s)}, {R('v', vK + 4*(4*kt+d))}, {R('v', vQ + 16*q + 4*d)}, {c}"))
        else:
            for dt in range(8):
                o = 32*q + 4*dt
                mf.append(("P", q, True, f"{MF} {R('a',o)}, {R('v', vV + 4*dt)}, {R('v', vP + 4*q)}, {R('a',o)}"))
            mf.append(("P", q, True, f"{MF} {R('v', vL + 4*q)}, {R('v', vONE)}, {R('v', vP + 4*q)}, {R('v', vL + 4*q)}"))
    N = len(mf)
    used = [0] * N
    fill = []
    BAR = 1
    used[BAR] = 99
    fill.append((0, "sc", "s_waitcnt vmcnt(@ring,4) lgkmcnt(0)"))
    fill.append((BAR, "sc", "s_barrier"))
    fn = fill_next(False)
    ops = [f"s_add_u32 m0, s{sRD}, s{sWOFF}"] + rd_adv() + fn[1:3] + fn[6:]
    for j, o in enumerate(ops): fill.append((2 + j, "sc", o))
    def put(g, cls, text, cost):
        used[g % N] += cost; fill.append((g, cls, text))
    vfree = pos[("P", wrapped[-1])]; kfree = pos[("S", nq - 1)]
    for f in range(8):
        put(vfree + f, "ds", vread(f, 0), 1); put(vfree + f, "ds", vread(f, 1), 1)
    for f in range(8):
        put(kfree + f, "ds", kread(f), 1)
    put(7, "va", f"v_add_u32 v{vVA}, s{sRD}, v{vVB}", 1)
    put(7, "va", f"v_add_u32 v{vKA}, s{sRD}, v{vKB}", 1)
    dg = (9, 22, 43, N - 7) if nq == 4 else (9, 16, 23, N - 7)
    for i in range(4):
        assert used[dg[i]] == 0, (dg[i], used)
        put(dg[i], "ds", ring_dma(i), 2)
    if nq == 3:
        for i in range(2):
            put(2 + i, "tr", f"ds_read_b128 {R('v', 116 + 4*i)}, v{vSW+1} offset:{1024*i}", 1)
            put(12 + 7*i, "tr", f"buffer_store_dwordx4 {R('v', 116 + 4*i)}, v{vSW+1}, s[84:87], 0 offen offset:{1024*i}{OST()} ;cnt", 2)
        put(24, "trv", f"v_add_u32 v{vSW+1}, 2048, v{vSW+1}", 1)
    def place(text, cost, lo, hi):
        for g in range(lo, hi + 1):
            if used[g % N] + cost <= 2:
                put(g, "va", text, cost); return g
        g = min(range(lo, hi + 1), key=lambda g: (used[g % N], g))
        put(g, "va", text, cost); return g
    if OPT.itstamp:
        fill.append((N - 4, "sc", "s_memrealtime s[90:91]"))
        put(5, "trv", f"v_cmp_eq_u32 vcc, s92, v{vLANE}", 1)
        put(5, "trv", "v_mov_b32 v27, s90", 1)
        put(8, "trv", "v_cndmask_b32 v0, v0, v27, vcc", 1)
        fill.append((12, "sc", "s_add_u32 s92, s92, 1"))
    exps = {}
    for q in range(nq):
        st = pos[("S", q)] + 8 + 2
        dl = pos[("P", q)] - 2
        if dl < st: dl += N
        g = st
        for i in range(8):
            g = place(f"v_exp_f32 v{vS+8*q+i}, v{vS+8*q+i}", 2, g, dl - (7 - i) - 1); exps[(q, i)] = g; g += 1
    for q in range(nq):
        dl = pos[("P", q)] - 2
        if dl < pos[("S", q)]: dl += N
        for i in range(1, 8, 2):
            place(f"v_cvt_pk_bf16_f32 v{vP+4*q+i//2}, v{vS+8*q+i-1}, v{vS+8*q+i}", 1, exps[(q, i)] + 1, dl)
    return mf, fill, N, wrapped, used, pos

def OST(): return ['', ' nt', ' sc1', ' sc0 sc1', ' nt sc1'][OPT.ostore]

def lane_max4(r, t):
    return [f"v_mov_b32 v{t}, v{r}", f"v_permlane32_swap_b32 v{r}, v{t}", f"v_max_f32 v{r}, v{r}, v{t}",
            f"v_mov_b32 v{t}, v{r}", f"v_permlane16_swap_b32 v{r}, v{t}", f"v_max_f32 v{r}, v{r}, v{t}"]
def first_max(q):
    s = vS + 8*q; m = vNM + 4*q; t = m + 1
    l = [f"v_max3_f32 v{m}, v{s}, v{s+1}, v{s+2}", f"v_max3_f32 v{t}, v{s+3}, v{s+4}, v{s+5}",
         f"v_max3_f32 v{m}, v{m}, v{s+6}, v{s+7}", f"v_max_f32 v{m}, v{m}, v{t}"]
    l += lane_max4(m, t)
    l += [f"v_sub_f32 v{s+i}, v{s+i}, v{m}" for i in range(8)]
    l += [f"v_sub_f32 v{m+i}, 0, v{m}" for i in (1, 2, 3, 0)]
    return l

def zero_c(t): return t[:t.rindex(",")] + ", 0"

def kv_emit(seg, nq, mode, loop_tail=None):
    mf, fill, N, wrapped, used, pos = kv_sched(nq)
    sc, ds, va = {}, {}, {}
    tab = {"sc": sc, "ds": ds, "va": va, "tr": ds, "trv": va}
    if mode == "first":
        for q in range(nq): va.setdefault(pos[("S", q)] + 7, []).extend(first_max(q))
    for g, cls, text in sorted(fill, key=lambda x: -(x[0] // N)):
        w = g >= N
        if mode == "first" and w: continue
        if mode == "tail" and not w: continue
        if mode != "body" and (cls in ("tr", "trv") or "s_memrealtime" in text or "s92" in text): continue
        tab[cls].setdefault(g % N, []).append(text)
    ml = []
    for k, q, head, t in mf:
        if mode == "first":
            if k == "P" and q in wrapped: t = None
            elif head: t = zero_c(t)
        if mode == "second" and k == "P" and q in wrapped: t = zero_c(t)
        if mode == "tail" and not (k == "P" and q in wrapped): t = None
        ml.append(t)
    if loop_tail:
        sc.setdefault(N - 1, []).append("s_waitcnt lgkmcnt(0)")
        for j, o in enumerate(loop_tail[:-1]): sc.setdefault(N - 3 + j, []).append(o)
    seg.gaps(ml, sc, ds, va)
    if loop_tail: seg.e(loop_tail[-1])

def q_convert(seg, hh, nq):
    for q in range(nq):
        for d in range(4):
            dst = vQ + 16*q + 4*d
            src = 128 + 32*q + 8*d
            if hh == 1:
                tb = TSET[d & 1]
                for i in range(8): seg.e(f"v_accvgpr_read_b32 v{tb+i}, a{src+i}")
                src = tb
            for i in range(8): seg.e(f"v_mul_f32 v{src+i}, s{sC}, v{src+i}")
            for i in range(4): seg.e(f"v_cvt_pk_bf16_f32 v{dst+i}, v{src+2*i}, v{src+2*i+1}")
            for sw in ("32", "16"):
                seg.e(f"v_permlane{sw}_swap_b32 v{dst}, v{dst+2}"); seg.e(f"v_permlane{sw}_swap_b32 v{dst+1}, v{dst+3}")

def o_norm(seg, qs, to_lds):
    for q in qs:
        seg.e(f"v_rcp_f32 v{vT+q}, v{vL+4*q}")
        for m in range(4):
            tb = TSET[m & 1]; pb = PSET[m & 1]
            for i in range(8): seg.e(f"v_accvgpr_read_b32 v{tb+i}, a{32*q+8*m+i}")
            for i in range(8): seg.e(f"v_mul_f32 v{tb+i}, v{vT+q}, v{tb+i}")
            for i in range(4): seg.e(f"v_cvt_pk_bf16_f32 v{pb+i}, v{tb+2*i}, v{tb+2*i+1}")
            if to_lds: seg.e(f"ds_write_b128 v{vSW}, {R('v',pb)} offset:{4096*q + 1024*m} ;free")
            else: seg.e(f"buffer_store_dwordx4 {R('v',pb)}, v{vST}, s[16:19], s{sSO+q} offen offset:{1024*m}{OST()}")

def pad_stores(seg, nq):
    if nq == 3:
        seg.e(f"v_mov_b32 v{vT+4}, 0x100000")
        for i in range(8): seg.e(f"buffer_store_dword v{vT+4}, v{vT+4}, s[84:87], 0 offen ;cnt")

def check(seg, nq):
    for q in range(nq):
        seg.e(f"v_cmp_nlt_f32 s[{52+2*q}:{53+2*q}], v{vL+4*q}, s{sTHR}")
    for q in range(1, nq): seg.e(f"s_or_b64 s[52:53], s[52:53], s[{52+2*q}:{53+2*q}]")
    seg.e("s_cbranch_scc1 L1_fb")

def fallback(segs):
    a, b, c, d, e0, e1, e2 = segs
    tK, tV, vko, vvo, tm = vV, vV + 16, vV + 20, vV + 21, vV + 24
    a.e("L1_fb:")
    a.e(f"""s_lshl_b32 s52, s30, 5
    s_lshl_b32 s53, s31, 1
    s_add_u32 s52, s52, s53
    s_add_u32 s52, s52, s{sHH}
    s_lshl_b32 s52, s52, 18
    s_add_u32 s60, s22, s52
    s_addc_u32 s61, s23, 0
    s_mov_b32 s62, 0x40000
    s_mov_b32 s63, 0x20000
    s_add_u32 s64, s24, s52
    s_addc_u32 s65, s25, 0
    s_mov_b32 s66, 0x40000
    s_mov_b32 s67, 0x20000
    v_and_b32 v{tm}, 15, v{vLANE}
    v_lshrrev_b32 v{tm+1}, 4, v{vLANE}
    v_lshlrev_b32 v{vko}, 8, v{tm}
    v_lshl_add_u32 v{vko}, v{tm+1}, 4, v{vko}
    v_lshlrev_b32 v{vvo}, 10, v{tm+1}
    v_lshl_add_u32 v{vvo}, v{tm}, 1, v{vvo}
    s_mov_b32 s54, 0""")
    for q in range(4): a.e(f"v_mov_b32 v{tm+q}, 0xff800000")
    b.e("L1_fb1:")
    for dd in range(4): b.e(f"buffer_load_dwordx4 {R('v', tK+4*dd)}, v{vko}, s[60:63], s54 offen offset:{64*dd}")
    b.e("s_waitcnt vmcnt(0)")
    for q in range(4):
        s = vS + 8*q
        for dd in range(4):
            b.e(f"{MF} {R('v',s)}, {R('v', tK+4*dd)}, {R('v', vQ+16*q+4*dd)}, {'0' if dd == 0 else R('v',s)}")
    for q in range(4):
        s = vS + 8*q
        b.e(f"v_max3_f32 v{tm+q}, v{tm+q}, v{s}, v{s+1}"); b.e(f"v_max3_f32 v{tm+q}, v{tm+q}, v{s+2}, v{s+3}")
    b.e("s_add_u32 s54, s54, 4096\ns_cmp_lt_u32 s54, 0x40000\ns_cbranch_scc1 L1_fb1")
    for q in range(4):
        for o in lane_max4(tm + q, tm + 4 + q): c.e(o)
    for q in range(4):
        for i in range(4): c.e(f"v_sub_f32 v{vNM+4*q+i}, 0, v{tm+q}")
    for i in range(128): c.e(f"v_accvgpr_write_b32 a{i}, 0")
    for i in range(16): c.e(f"v_mov_b32 v{vL+i}, 0")
    c.e("s_mov_b32 s54, 0")
    d.e("L1_fb2:")
    d.e("s_add_u32 s55, s54, 4096")
    for kt in range(2):
        for dd in range(4): d.e(f"buffer_load_dwordx4 {R('v', tK+4*dd)}, v{vko}, s[60:63], s{54+kt} offen offset:{64*dd}")
        d.e("s_waitcnt vmcnt(0)")
        for q in range(4):
            s = vS + 8*q + 4*kt
            for dd in range(4):
                d.e(f"{MF} {R('v',s)}, {R('v', tK+4*dd)}, {R('v', vQ+16*q+4*dd)}, {R('v', vNM+4*q) if dd == 0 else R('v',s)}")
        d.e("s_nop 7")
    for i in range(32): d.e(f"v_exp_f32 v{vS+i}, v{vS+i}")
    for i in range(16): d.e(f"v_cvt_pk_bf16_f32 v{vP+i}, v{vS+2*i}, v{vS+2*i+1}")
    for dt in range(8):
        for j in range(8):
            op = "buffer_load_short_d16_hi" if j & 1 else "buffer_load_short_d16"
            d.e(f"{op} v{tV+j//2}, v{vvo}, s[64:67], s{54+(j>>2)} offen offset:{256*(j&3)+32*dt}")
        d.e("s_waitcnt vmcnt(0)")
        for q in range(4):
            o = 32*q + 4*dt
            d.e(f"{MF} {R('a',o)}, {R('v',tV)}, {R('v', vP+4*q)}, {R('a',o)}")
        d.e("s_nop 7")
    for q in range(4): d.e(f"{MF} {R('v', vL+4*q)}, {R('v', vONE)}, {R('v', vP+4*q)}, {R('v', vL+4*q)}")
    d.e("s_add_u32 s54, s54, 8192\ns_cmp_lt_u32 s54, 0x40000\ns_cbranch_scc1 L1_fb2")
    e0.e(f"s_nop 7\ns_cmp_eq_u32 s{sHH}, 1\ns_cbranch_scc1 L1_fb4")
    o_norm(e1, (0, 1), True)
    e1.e(f"s_cmp_eq_u32 s{sW}, 3\ns_cbranch_scc1 L1v3_t2b\ns_branch L1v4_t2b")
    e2.e("L1_fb4:")
    o_norm(e2, (0, 1), False)
    e2.e(f"s_cmp_eq_u32 s{sW}, 3\ns_cbranch_scc1 L1v3_fb\ns_branch L1v4_fb")

def kernel1():
    pa = Seg(); pa4 = Seg(); pb = Seg(); pb4 = Seg(); pc = Seg()
    pa.e(f"""attn_kernel:
    s_cmp_ge_u32 s2, 256
    s_cbranch_scc1 L1_end
    s_load_dwordx4 s[20:23], s[0:1], 0
    s_load_dwordx4 s[24:27], s[0:1], 16
    s_load_dwordx2 s[28:29], s[0:1], 56
    v_lshrrev_b32 v{vT}, 6, v0
    v_and_b32 v{vLANE}, 63, v0
    v_readfirstlane_b32 s{sW}, v{vT}
    s_and_b32 s52, s2, 7
    s_lshr_b32 s53, s2, 3
    s_lshr_b32 s30, s52, 1
    s_lshl_b32 s30, s30, 2
    s_lshr_b32 s54, s53, 3
    s_add_u32 s30, s30, s54
    s_and_b32 s31, s52, 1
    s_lshl_b32 s31, s31, 3
    s_and_b32 s59, s53, 7
    s_add_u32 s31, s31, s59
    s_mul_i32 s{sWOFF}, s{sW}, {4*GS}
    s_and_b32 s55, s{sW}, 1
    s_lshr_b32 s56, s{sW}, 1""")
    stamp(pa, 0)
    if OPT.stamp: pa.e("s_memrealtime s[88:89]\ns_waitcnt lgkmcnt(0)")
    if OPT.prefetch_code:
        pa.e(f"""s_getpc_b64 s[60:61]
        L1_pc:
        s_sub_u32 s60, s60, L1_pc-attn_kernel
        s_subb_u32 s61, s61, 0
        s_mov_b32 s62, L1_fb-attn_kernel
        s_mov_b32 s63, 0x20000
        s_lshl_b32 s64, s59, 13
        v_lshlrev_b32 v{vT+2}, 5, v0
        v_add_u32 v{vT+2}, s64, v{vT+2}
        buffer_load_dword v{vONE}, v{vT+2}, s[60:63], 0 offen""")
    if OPT.rot:
        pa.e(f"""s_mul_i32 s57, s54, 10
        s_mul_i32 s58, s59, 5
        s_add_u32 s57, s57, s58
        s_lshr_b32 s57, s57, 2
        s_sub_u32 s58, s57, 10
        s_cmp_ge_u32 s57, 10
        s_cselect_b32 s57, s58, s57
        s_lshl_b32 s{sXO}, s57, 7
        s_lshl_b32 s{sFV}, s57, 19""")
    else:
        pa.e(f"s_mov_b32 s{sXO}, 0\ns_mov_b32 s{sFV}, 0")
    pa.e(f"""v_and_b32 v{vT}, 15, v{vLANE}
    v_lshrrev_b32 v{vT+1}, 4, v{vLANE}
    v_lshlrev_b32 v{vST}, 4, v{vLANE}""")
    pa.e(f"""v_and_b32 v{vT+2}, 1, v{vT+1}
    v_lshlrev_b32 v{vT+2}, 17, v{vT+2}
    v_lshrrev_b32 v{vT+3}, 1, v{vT+1}
    v_lshl_add_u32 v{vT+2}, v{vT+3}, 15, v{vT+2}
    v_lshl_add_u32 v{vT+2}, v{vT}, 4, v{vT+2}
    s_lshl_b32 s57, s55, 16
    s_lshl_b32 s58, s56, 8
    s_add_u32 s57, s57, s58
    v_add_u32 v{vF}, s57, v{vT+2}""")
    for i in range(1, 4): pa.e(f"v_add_u32 v{vF+i}, {(8192-GS)*i}, v{vF}")
    pa.e(f"""v_lshrrev_b32 v{vT+2}, 3, v{vLANE}
    v_mul_u32_u24 v{vT+2}, 1280, v{vT+2}
    v_and_b32 v{vT+3}, 7, v{vLANE}
    v_xor_b32 v{vT+3}, v{vT+3}, v{vT+1}
    v_lshl_add_u32 v{vXF}, v{vT+3}, 4, v{vT+2}
    v_xor_b32 v{vT+3}, 4, v{vT+3}
    v_lshl_add_u32 v{vXF+1}, v{vT+3}, 4, v{vT+2}
    v_add_u32 v{vXF+2}, {9216*2}, v{vXF}
    v_add_u32 v{vXF+3}, {9216*3}, v{vXF+1}
    v_add_u32 v{vXF+1}, {9216}, v{vXF+1}
    s_add_u32 s{sXH}, s{sXO}, 40960
    s_lshl_b32 s{sXM}, s{sW}, 13
    s_add_u32 s{sXM}, s{sXM}, {XB}
    s_mov_b32 s{sFP}, 0
    s_mov_b32 s{sFS}, {WSTEP}
    s_mov_b32 s{sFL}, {WSTEP*19}
    s_mov_b32 s{sWRAP}, {WSTEP*20}
    s_mov_b32 s7, 0x20000
    s_mov_b32 s15, 0x20000
    s_lshl_b32 s57, s31, 9
    s_sub_u32 s6, {640*8192}, s57
    s_mul_i32 s58, s30, 240
    s_lshl_b32 s60, s{sW}, 6
    s_add_u32 s58, s58, s60
    s_mul_i32 s58, s58, 1280
    s_sub_u32 s14, {16*240*1280}, s58
    s_waitcnt lgkmcnt(0)
    s_add_u32 s4, s26, s57
    s_addc_u32 s5, s27, 0
    s_add_u32 s12, s20, s58
    s_addc_u32 s13, s21, 0""")
    def wfill(seg):
        for o in fill_next(True): seg.e(o)
        for i in range(4): seg.e(ring_dma(i, OPT.nt_w))
    def xfill(seg, seg4, n, lab):
        for i in range(8):
            sg = seg if i < 6 else seg4
            if i % 4 == 0: sg.e(f"s_add_u32 m0, s{sXM}, {XBUF*n + 1024*i}")
            if i == 6: seg.e(f"s_cmp_eq_u32 s{sW}, 3\ns_cbranch_scc1 {lab}")
            sg.e(x_dma(i))
    wfill(pa); xfill(pa, pa4, 0, "L1_xa")
    pb.e("L1_xa:")
    wfill(pb)
    pb.e(f"""s_lshl_b32 s57, s30, 5
    s_lshl_b32 s58, s31, 1
    s_add_u32 s57, s57, s58
    s_lshl_b32 s57, s57, 18
    s_cmp_ge_u32 s{sW}, 2
    s_cselect_b32 s8, s24, s22
    s_cselect_b32 s9, s25, s23
    s_add_u32 s8, s8, s57
    s_addc_u32 s9, s9, 0
    s_sub_u32 s8, s8, {KVBIAS}
    s_subb_u32 s9, s9, 0
    s_mov_b32 s10, {524288 + KVBIAS}
    s_mov_b32 s11, 0x20000
    s_mul_i32 s57, s30, {15*4096}
    s_mul_i32 s58, s31, {2*OH}
    s_add_u32 s57, s57, s58
    s_add_u32 s84, s28, s57
    s_addc_u32 s85, s29, 0
    s_lshl_b32 s58, s{sW}, 14
    s_add_u32 s58, s58, {OH}
    s_add_u32 s16, s84, s58
    s_addc_u32 s17, s85, 0
    s_mov_b32 s18, {4*4096}
    s_mov_b32 s19, 0x20000
    s_sub_u32 s84, s84, {XB}
    s_subb_u32 s85, s85, 0
    s_mov_b32 s86, 0
    s_mov_b32 s87, 0x20000
    s_mov_b32 s{sRD}, 0
    s_mov_b32 s{sXD}, {XBUF}
    s_mov_b32 s{sCNT}, 0
    s_mov_b32 s92, 0
    s_mov_b32 s{sHH}, 0
    s_mov_b32 s{sC}, {hex(f2u(math.log2(math.e) / math.sqrt(128.0)))}
    s_mov_b32 s{sTHR}, {hex(f2u(2.0**60))}""")
    for q in range(4): pb.e(f"s_mov_b32 s{sSO+q}, {4096*q}")
    pb.e(f"""v_lshlrev_b32 v{vT+2}, 11, v{vT+1}
    v_lshl_add_u32 v{vT+2}, v{vT}, 4, v{vT+2}
    s_lshl_b32 s57, s55, 10
    v_add_u32 v{vFKV+3}, s57, v{vT+2}""")
    for i in range(3): pb.e(f"v_add_u32 v{vFKV+i}, {(GS-256)*(3-i)}, v{vFKV+3}")
    pb.e(f"""v_and_b32 v{vT+2}, 7, v{vT}
    v_mul_u32_u24 v{vT+2}, {GS}, v{vT+2}
    v_lshrrev_b32 v{vT+3}, 3, v{vT}
    v_lshl_add_u32 v{vT+2}, v{vT+3}, 8, v{vT+2}
    v_lshl_add_u32 v{vKB}, v{vT+1}, 4, v{vT+2}""")
    pb.e(f"""v_bfe_u32 v{vT+2}, v{vLANE}, 2, 3
    v_mul_u32_u24 v{vT+2}, {GS}, v{vT+2}
    v_lshrrev_b32 v{vT+3}, 5, v{vLANE}
    v_lshl_add_u32 v{vT+2}, v{vT+3}, 8, v{vT+2}
    v_and_b32 v{vT+3}, 3, v{vLANE}
    v_lshl_add_u32 v{vVB}, v{vT+3}, 3, v{vT+2}
    v_mov_b32 v{vVA}, v{vVB}""")
    pb.e(f"""v_lshrrev_b32 v{vT+2}, 1, v{vT}
    v_xor_b32 v{vT+2}, v{vT+2}, v{vT+1}
    v_lshlrev_b32 v{vT+3}, 7, v{vT}
    v_add_u32 v{vT+3}, s{sXM}, v{vT+3}
    v_lshl_add_u32 v{vXR}, v{vT+2}, 4, v{vT+3}
    v_xor_b32 v{vT+2}, 4, v{vT+2}
    v_lshl_add_u32 v{vXR+1}, v{vT+2}, 4, v{vT+3}""")
    for i in range(4): pb.e(f"v_mov_b32 v{vK+i}, 0")
    for i in range(128, 256, 16):
        for f in "va": pb.e(f"v_mfma_f32_32x32x16_bf16 {R(f,i,16)}, {R('v',vK)}, {R('v',vK)}, 0")
    wfill(pb)
    for o in x_adv(): pb.e(o)
    xfill(pb, pb4, 1, "L1_xb")
    pc.e("L1_xb:")
    for e in range(3, OPT.lead): wfill(pc)
    pc.e("s_waitcnt vmcnt(@x,1)\ns_barrier")
    stamp(pc, 1)
    pc.e(f"s_cmp_eq_u32 s{sW}, 3\ns_cbranch_scc1 L1v3_go")
    var = {}
    for nq in (4, 3):
        L = f"L1v{nq}"
        wrapped = (2, 3) if nq == 4 else (1, 2)
        early = [q for q in range(nq) if q not in wrapped]
        p2 = Seg()
        p2.e(f"{L}_go:")
        p2.e(xread(0, 0, 0)); p2.e(wread(0, 0)); p2.e(wread(0, 1))
        for q in range(1, nq): p2.e(xread(0, q, 0))
        for f in range(1, 16): p2.e(wread(f, 0)); p2.e(wread(f, 1))
        p2.e(f"v_add_u32 v{vXR}, {XBUF}, v{vXR}")
        w0 = Seg(); w1 = Seg(); sw = Seg()
        swtest = [f"s_cmp_eq_u32 s{sCNT}, 8", f"s_cbranch_scc1 {L}_sw"]
        w0.e(".p2align 4\n" + f"{L}_wloop:")
        if OPT.lead == 4:
            for o in swtest: w0.e(o)
            w0.e(f"{L}_swb:")
        w_step(w0, nq, 0, swtest if OPT.lead == 3 else [])
        if OPT.lead == 3: w1.e(f"{L}_swb:")
        w_step(w1, nq, 1, [f"s_add_u32 s{sCNT}, s{sCNT}, 1", f"s_cmp_lt_u32 s{sCNT}, 9", f"s_cbranch_scc1 {L}_wloop"])
        sw.e(f"""{L}_sw:
        s_mov_b32 s4, s8
        s_mov_b32 s5, s9
        s_mov_b32 s6, s10
        s_mov_b32 s{sFS}, 8192
        s_mov_b32 s{sFL}, 524288
        s_cmp_ge_u32 s{sW}, 2
        s_cselect_b32 s{sFV}, -8192, 0""")
        for i in range(4): sw.e(f"v_mov_b32 v{vF+i}, v{vFKV+i}")
        sw.e(f"s_branch {L}_swb")
        p = Seg()
        w_last(p, nq)
        for i in range(4): p.e(f"v_mov_b32 v{vONE+i}, 0x3f803f80")
        p.e(f"s_lshl_b32 s57, s{sW}, 14\ns_add_u32 s57, s57, {XB}\nv_add_u32 v{vSW}, s57, v{vST}\nv_add_u32 v{vSW+1}, {XB}, v{vST}")
        q_convert(p, 0, nq)
        kv_emit(p, nq, "first"); kv_emit(p, nq, "second")
        t1 = Seg(); stamp(t1, 2)
        t1 += lsched(p, verbose=f"T1 nq={nq}" if OPT.verbose else None)
        stamp(t1, 3)
        pad_stores(t1, nq)
        t1.e(f"s_mov_b32 s{sCNT}, 0")
        kb = Seg()
        kb.e(".p2align 6\n" + f"{L}_kloop:")
        kv_emit(kb, nq, "body", loop_tail=[f"s_add_u32 s{sCNT}, s{sCNT}, 1", f"s_cmp_lt_u32 s{sCNT}, 30", f"s_cbranch_scc1 {L}_kloop"])
        kx = Seg()
        kx.e(f"s_cmp_eq_u32 s{sHH}, 1\ns_cbranch_scc1 {L}_fa")
        stamp(kx, 4)
        p = Seg(); kv_emit(p, nq, "tail"); o_norm(p, early, True)
        t2a = Seg(lsched(p, verbose=f"T2a nq={nq}" if OPT.verbose else None)); check(t2a, nq)
        p = Seg()
        if OPT.pf_wo:
            p.e(f"""s_load_dwordx2 s[60:61], s[0:1], 32
            s_lshl_b32 s52, s2, 2
            s_add_u32 s52, s52, s{sW}
            s_mul_i32 s52, s52, 5120
            s_mov_b32 s62, {4096*1280}
            s_mov_b32 s63, 0x20000
            v_mul_u32_u24 v{vT+5}, 5, v{vST}
            s_waitcnt lgkmcnt(0)
            buffer_load_dword v{vT+6}, v{vT+5}, s[60:63], s52 offen""")
        t2p = p
        p = Seg()
        p.e(f"s_mov_b32 s{sHH}, 1\ns_mov_b32 s86, {XB + 61440}\nv_add_u32 v{vSW+1}, {XB}, v{vST}")
        q_convert(p, 1, nq)
        o_norm(p, wrapped, True)
        kv_emit(p, nq, "first"); kv_emit(p, nq, "second")
        t2b = Seg(); t2b.e(f"{L}_t2b:"); t2b += t2p
        t2b += lsched(p, verbose=f"T2b nq={nq}" if OPT.verbose else None)
        stamp(t2b, 5)
        pad_stores(t2b, nq)
        t2b.e(f"s_mov_b32 s{sCNT}, 0\ns_branch {L}_kloop")
        p = Seg(); kv_emit(p, nq, "tail"); o_norm(p, early, False)
        fa = Seg(); fa.e(f"{L}_fa:"); stamp(fa, 6)
        fa += lsched(p, dma_gap=16, verbose=f"Fa nq={nq}" if OPT.verbose else None); check(fa, nq)
        p = Seg(); o_norm(p, wrapped, False)
        fb_ = Seg(); fb_.e(f"{L}_fb:"); fb_ += lsched(p, dma_gap=16)
        fb_.e("s_branch L1_fin" if OPT.stamp else "s_endpgm")
        var[nq] = dict(p2=p2, w0=w0, w1=w1, sw=sw, t1=t1, kb=kb, kx=kx, t2a=t2a, t2b=t2b, fa=fa, fb=fb_)
    fin = Seg()
    if OPT.stamp:
        fin.e("L1_fin:\ns_waitcnt vmcnt(0)")
        fin.e(f"""s_memtime s[84:85]
        s_memrealtime s[86:87]
        s_waitcnt lgkmcnt(0)
        s_lshl_b32 s52, s2, 2
        s_add_u32 s52, s52, s{sW}
        s_lshl_b32 s52, s52, 6
        s_add_u32 s60, s28, 0x4000000
        s_addc_u32 s61, s29, 0
        s_mov_b32 s62, 0x100000
        s_mov_b32 s63, 0x20000
        v_mov_b32 v{vT}, s52""")
        for i in range(10):
            fin.e(f"v_mov_b32 v{vT+1}, s{70+2*i}")
            fin.e(f"buffer_store_dword v{vT+1}, v{vT}, s[60:63], 0 offen offset:{4*i}")
            fin.e("s_nop 1")
        if OPT.itstamp:
            fin.e(f"""s_lshl_b32 s52, s52, 2
            s_add_u32 s52, s52, 0x40000
            v_lshlrev_b32 v{vT}, 2, v{vLANE}
            buffer_store_dword v0, v{vT}, s[60:63], s52 offen""")
        fin.e("s_waitcnt vmcnt(0)")
    fin.e("L1_end:\ns_endpgm")
    fb = [Seg() for _ in range(7)]
    fallback(fb)
    paths = []; vp = []
    for nq in (4, 3):
        v = var[nq]
        pro = [pa, pa4, pb, pb4, pc] if nq == 4 else [pa, pb, pc]
        wsw = [v["sw"], v["w0"], v["w1"]] if OPT.lead == 4 else [v["w0"], v["sw"], v["w1"]]
        kk = [v["kb"], v["kb"], v["kx"]]
        paths.append(pro + [v["p2"], v["w0"], v["w1"], v["w0"], v["w1"]] + wsw + [v["t1"]] + kk + [v["t2a"], v["t2b"]] + kk + [v["fa"], v["fb"], fin])
        fbm = [fb[0], fb[1], fb[1], fb[2], fb[3], fb[3], fb[4]]
        paths.append(kk + [v["t2a"]] + fbm + [fb[5], v["t2b"]])
        paths.append(kk + [v["fa"]] + fbm + [fb[6], v["fb"]])
        vp.append(pro + [v["w0"], v["w1"]] * 9 + [v["t1"]] + [v["kb"]] * 30 + [v["t2b"]] + [v["kb"]] * 30)
    finish(paths)
    resolve_vm(vp)
    out = [pa, pa4, pb, pb4, pc]
    for nq in (4, 3):
        v = var[nq]
        out += [v[n] for n in ("p2", "w0", "w1", "t1", "kb", "kx", "t2a", "t2b", "fa", "fb", "sw")]
    out += [fin] + fb
    return out

K2_OA = 4 * TILE
K2_ST = K2_OA + 20 * 1024
assert 3 * K2_ST <= 163840
def kernel2():
    vAB, vBB, vAA, vBA, vWF, vOF, vT2 = 2, 3, 4, 5, 6, 10, 16
    FR = 32
    ACC = 96
    sRD2, sFW, sFOo, sM1, sM2, sCN = 32, 33, 34, 35, 36, 37
    def fb_(par, rt): return FR + 28*par + 4*rt
    def fa_(par, n): return FR + 28*par + 20 + 4*n
    def reads(par, m):
        l = []
        for n in range(2):
            for s in range(2):
                l.append(f"ds_read_b64_tr_b16 {R('v', fa_(par,n) + 2*s, 2)}, v{vAA} offset:{TILE*m + 512*s + 32*n}")
        for rt in range(5):
            l.append(f"ds_read_b128 {R('v', fb_(par,rt))}, v{vBA} offset:{K2_OA + 5120*m + 1024*rt}")
        return [l[0], l[1], l[4], l[2], l[3], l[5], l[6], l[7], l[8]]
    def mfs(par):
        return [f"{MF} {R('v', ACC + 4*(2*rt+n))}, {R('v', fa_(par,n))}, {R('v', fb_(par,rt))}, {R('v', ACC + 4*(2*rt+n))}"
                for rt in range(5) for n in range(2)]
    ntw = "nt " if OPT.k2_nt_w else ""; nto = "nt " if OPT.k2_nt_o else ""
    def dmas(slot, sw, sw2, so, so2):
        l = []
        for i in range(8):
            pre = None
            if i == 0: pre = f"s_add_u32 m0, {slot}, s{sM1}"
            if i == 4: pre = f"s_add_u32 m0, m0, {4*GS}"
            l.append((pre, f"buffer_load_dwordx4 v{vWF+(i&3)}, s[4:7], {sw if i < 4 else sw2} offen offset:{GS*(i&3)} {ntw}lds"))
        for rt in range(5):
            pre = None
            if rt == 0: pre = f"s_add_u32 m0, {slot}, s{sM2}"
            if rt == 4: pre = f"s_add_u32 m0, m0, 4096"
            l.append((pre, f"buffer_load_dwordx4 v{vOF+(rt&3)}, s[8:11], {so if rt < 4 else so2} offen offset:{1024*(rt&3)} {nto}lds"))
        return l
    pro = Seg()
    pro.e(f"""oproj_kernel:
    s_cmp_ge_u32 s2, 240
    s_cbranch_scc1 L2_end
    s_load_dwordx4 s[20:23], s[0:1], 32
    s_load_dwordx2 s[24:25], s[0:1], 56
    v_lshrrev_b32 v{vT2}, 6, v0
    v_and_b32 v1, 63, v0
    v_readfirstlane_b32 s3, v{vT2}
    s_and_b32 s40, s2, 7
    s_lshr_b32 s41, s2, 3
    s_mul_i32 s42, s41, 52
    s_lshr_b32 s42, s42, 8
    s_mul_i32 s43, s42, 5
    s_sub_u32 s31, s41, s43
    s_mul_i32 s30, s40, 6
    s_add_u32 s30, s30, s42
    s_mul_i32 s{sM1}, s3, {TILE}
    s_mul_i32 s{sM2}, s3, 5120
    s_add_u32 s{sM2}, s{sM2}, {K2_OA}
    v_and_b32 v{vT2}, 15, v1
    v_lshrrev_b32 v{vT2+1}, 4, v1""")
    stamp(pro, 0)
    if OPT.stamp: pro.e("s_memrealtime s[84:85]\ns_waitcnt lgkmcnt(0)")
    pro.e(f"""v_mul_u32_u24 v{vT2+2}, {8*1280}, v{vT2+1}
    v_lshl_add_u32 v{vT2+2}, v{vT2}, 4, v{vT2+2}
    s_mul_i32 s44, s3, {32*1280}
    v_add_u32 v{vWF}, s44, v{vT2+2}""")
    for i in range(1, 4): pro.e(f"v_add_u32 v{vWF+i}, {(1280-GS)*i}, v{vWF}")
    pro.e(f"""v_lshlrev_b32 v{vBB}, 4, v1
    s_lshl_b32 s44, s3, 10
    v_add_u32 v{vOF}, s44, v{vBB}""")
    for i in range(1, 4): pro.e(f"v_add_u32 v{vOF+i}, {(4096-1024)*i}, v{vOF}")
    pro.e(f"""s_waitcnt lgkmcnt(0)
    s_lshl_b32 s44, s31, 8
    s_add_u32 s4, s20, s44
    s_addc_u32 s5, s21, 0
    s_sub_u32 s6, {4096*1280}, s44
    s_mov_b32 s7, 0x20000
    s_mul_i32 s44, s30, {5*4096}
    s_add_u32 s8, s24, s44
    s_addc_u32 s9, s25, 0
    s_mov_b32 s10, {31*OH + 5*4096}
    s_mov_b32 s11, 0x20000""")
    for st in range(3):
        pro.e(f"s_mov_b32 s{46+4*st}, {163840*st}\ns_mov_b32 s{47+4*st}, {163840*st + 5120}\ns_mov_b32 s{48+4*st}, {OH*st}\ns_mov_b32 s{49+4*st}, {OH*st + 4*4096}")
        for pre, d in dmas(str(K2_ST*st), f"s{46+4*st}", f"s{47+4*st}", f"s{48+4*st}", f"s{49+4*st}"):
            if pre: pro.e(pre)
            pro.e(d)
    pro.e(f"""s_mul_i32 s44, s30, {80*1280}
    s_lshl_b32 s45, s31, 8
    s_add_u32 s44, s44, s45
    s_lshl_b32 s45, s3, 6
    s_add_u32 s44, s44, s45
    s_add_u32 s12, s22, s44
    s_addc_u32 s13, s23, 0
    s_sub_u32 s14, {16*240*1280}, s44
    s_mov_b32 s15, 0x20000
    v_bfe_u32 v{vT2+2}, v1, 2, 3
    v_mul_u32_u24 v{vT2+2}, {GS}, v{vT2+2}
    v_lshrrev_b32 v{vT2+3}, 5, v1
    v_lshl_add_u32 v{vT2+2}, v{vT2+3}, 8, v{vT2+2}
    v_and_b32 v{vT2+3}, 3, v1
    v_lshl_add_u32 v{vT2+2}, v{vT2+3}, 3, v{vT2+2}
    s_lshl_b32 s45, s3, 6
    v_add_u32 v{vAB}, s45, v{vT2+2}
    v_mov_b32 v{vAA}, v{vAB}
    v_mov_b32 v{vBA}, v{vBB}
    v_mul_u32_u24 v{vT2+4}, 1280, v{vT2}
    v_lshl_add_u32 v{vT2+4}, v{vT2+1}, 4, v{vT2+4}
    s_mov_b32 s{sRD2}, 0
    s_mov_b32 s{sFW}, {163840*3}
    s_mov_b32 s{sFOo}, {OH*3}
    s_mov_b32 s{sCN}, 0""")
    for i in range(40): pro.e(f"v_mov_b32 v{ACC+i}, 0")
    pro.e("s_waitcnt vmcnt(26)\ns_barrier")
    stamp(pro, 1)
    for r in reads(0, 0): pro.e(r)
    def ksteps(seg, ms, head, fill, vm, loop_tail=None):
        mf = []; sc = {}; ds = {}; va = {}
        for j, (par, rm) in enumerate(ms):
            g0 = len(mf)
            mf += mfs(par)
            if rm is not None:
                rl = reads(1 - par, rm)
                st = g0 + (2 if (head and j == 0) else 0)
                gs = [st, st, st+1, st+2, st+2, st+3, st+4, st+5, st+6]
                for g, r in zip(gs, rl): ds.setdefault(g, []).append(r)
        if head:
            seg.e(f"s_mov_b32 s38, s{sRD2}")
            seg.e(f"s_add_u32 s{sRD2}, s{sRD2}, {K2_ST}\ns_cmp_ge_u32 s{sRD2}, {3*K2_ST}\ns_cselect_b32 s{sRD2}, 0, s{sRD2}")
            seg.e(f"s_waitcnt vmcnt({vm}) lgkmcnt(0)")
            sc.setdefault(0, []).append("s_barrier")
            va.setdefault(0, []).extend([f"v_add_u32 v{vAA}, s{sRD2}, v{vAB}", f"v_add_u32 v{vBA}, s{sRD2}, v{vBB}"])
        if fill:
            sc.setdefault(1, []).extend([f"s_add_u32 s39, s{sFW}, 5120", f"s_add_u32 s40, s{sFOo}, {4*4096}"])
            dl = dmas("s38", f"s{sFW}", "s39", f"s{sFOo}", "s40")
            for k, (pre, d) in enumerate(dl):
                g = 3 + (k * 35) // 13
                if pre: sc.setdefault(g - 1, []).append(pre)
                ds.setdefault(g, []).append(d)
            sc.setdefault(39, []).extend(["s_nop 0", f"s_add_u32 s{sFW}, s{sFW}, 163840", f"s_add_u32 s{sFOo}, s{sFOo}, {OH}"])
        if OPT.k2_nomfma:
            mf = [None] * len(mf)
            ds = {g: [x for x in l if x.startswith("buffer")] for g, l in ds.items()}
        seg.gaps(mf, sc, ds, va)
        if loop_tail:
            for o in loop_tail: seg.e(o)
    ksteps(pro, [(0, 1), (1, 2), (0, 3)], False, False, None)
    body = Seg(); t1 = Seg(); t2 = Seg(); t3 = Seg()
    body.e(".p2align 6\nL2_loop:")
    blk = [(1, 0), (0, 1), (1, 2), (0, 3)]
    ksteps(body, blk, True, True, 13, loop_tail=[f"s_add_u32 s{sCN}, s{sCN}, 1", f"s_cmp_lt_u32 s{sCN}, 29", "s_cbranch_scc1 L2_loop"])
    ksteps(t1, blk, True, False, 13)
    ksteps(t2, blk, True, False, 0)
    ksteps(t3, [(1, None)], False, False, None)
    stamp(t3, 2)
    for rt in range(5):
        a = ACC + 8*rt; d = FR + 4*rt
        for i in range(4): t3.e(f"v_cvt_pk_bf16_f32 v{d+i}, v{a+2*i}, v{a+2*i+1}")
    for sw in ("32", "16"):
        for rt in range(5):
            d = FR + 4*rt
            t3.e(f"v_permlane{sw}_swap_b32 v{d}, v{d+2}"); t3.e(f"v_permlane{sw}_swap_b32 v{d+1}, v{d+3}")
    for rt in range(5):
        t3.e(f"s_mov_b32 s{44+rt}, {16*1280*rt}")
        t3.e(f"buffer_store_dwordx4 {R('v', FR+4*rt)}, v{vT2+4}, s[12:15], s{44+rt} offen")
    if OPT.stamp:
        t3.e("s_waitcnt vmcnt(0)")
        stamp(t3, 3)
        t3.e(f"""s_memrealtime s[86:87]
        s_waitcnt lgkmcnt(0)
        s_sub_u32 s78, s86, s84
        s_lshl_b32 s52, s2, 2
        s_add_u32 s52, s52, s3
        s_lshl_b32 s52, s52, 6
        s_add_u32 s60, s24, 0x4100000
        s_addc_u32 s61, s25, 0
        s_mov_b32 s62, 0x100000
        s_mov_b32 s63, 0x20000
        v_mov_b32 v{vT2}, s52""")
        for i in range(9):
            t3.e(f"v_mov_b32 v{vT2+1}, s{70+2*i}")
            t3.e(f"buffer_store_dword v{vT2+1}, v{vT2}, s[60:63], 0 offen offset:{4*i}")
            t3.e("s_nop 1")
        t3.e("s_waitcnt vmcnt(0)")
    t3.e("L2_end:\ns_endpgm")
    finish([[pro, body, body, t1, t2, t3]])
    return [pro, body, t1, t2, t3]

HEAD = """; Fused Q-projection + attention (attn_kernel) and output projection (oproj_kernel), bf16 MFMA, gfx950.
; @launch kernel=attn_kernel grid=(256,1,1) block=(256,1,1) lds=163840
; @launch kernel=oproj_kernel grid=(240,1,1) block=(256,1,1) lds=163840
.amdgcn_target "amdgcn-amd-amdhsa--gfx950"
.text
"""
def desc(name, nv, acc):
    return f""".p2align 6
.amdhsa_kernel {name}
  .amdhsa_next_free_vgpr {nv}
  .amdhsa_next_free_sgpr 102
  .amdhsa_accum_offset {acc}
  .amdhsa_group_segment_fixed_size 0
  .amdhsa_kernarg_size 64
  .amdhsa_user_sgpr_count 2
  .amdhsa_user_sgpr_kernarg_segment_ptr 1
  .amdhsa_system_sgpr_workgroup_id_x 1
.end_amdhsa_kernel
"""
def build():
    s = HEAD
    if OPT.k2_twice:
        ln = "; @launch kernel=oproj_kernel grid=(240,1,1) block=(256,1,1) lds=163840\n"
        s = s.replace(ln, ln + ln)
    for name, k in (("attn_kernel", kernel1), ("oproj_kernel", kernel2)):
        s += f".globl {name}\n.p2align 8\n.type {name},@function\n"
        for seg in k():
            for i in seg:
                s += (i.text if i.kind in ("label", "dir") else "    " + i.text) + "\n"
    s += '.section .rodata,"a"\n' + desc("attn_kernel", 512, 256) + desc("oproj_kernel", 136, 136)
    return s

if __name__ == "__main__":
    out = sys.argv[1]
    for kv in sys.argv[2:]:
        k, v = kv.split("=")
        assert hasattr(OPT, k), k
        setattr(OPT, k, type(getattr(OPT, k))(int(v)))
    open(out, "w").write(build())
```
